```python
import torch

def _softmax(x, axis=-1):
    return torch.softmax(x, dim=axis)
def _gelu(x):
    return torch.nn.functional.gelu(x, approximate="tanh")
def _silu(x):
    return torch.nn.functional.silu(x)
def _sigmoid(x):
    return torch.sigmoid(x)
def _layernorm(x, axis=-1, eps=1e-5):
    m = x.mean(dim=axis, keepdim=True)
    v = x.var(dim=axis, keepdim=True, unbiased=False)
    return (x - m) / torch.sqrt(v + eps)
def _scatter_add(tgt, idx, src, axis=0):
    return tgt.clone().index_add_(axis, idx, src)
def _segment_sum(src, seg, n):
    out = torch.zeros((n,) + src.shape[1:], dtype=src.dtype)
    return out.index_add_(0, seg, src)
def _pad(x, pw):
    flat = tuple(v for pair in reversed(pw) for v in pair)
    return torch.nn.functional.pad(x, flat)

kernel_name = 'standalone__glu_gated_swiglu__prompt'

def setup_inputs():

    _w = (lambda a: (lambda t: t.to(torch.bfloat16) if t.is_floating_point() else t)(torch.as_tensor(a)))
    B, S, D, F = 1, 2048, 1024, 3584
    return {
        "x": _w((lambda *s: torch.randn(*s, dtype=torch.bfloat16) * 0.05)(B, S, D)),
        "w1": _w((lambda *s: torch.randn(*s, dtype=torch.bfloat16) * 0.05)(D, F) * (2.0 / D) ** 0.5),
        "w3": _w((lambda *s: torch.randn(*s, dtype=torch.bfloat16) * 0.05)(D, F) * (2.0 / D) ** 0.5),
        "w2": _w((lambda *s: torch.randn(*s, dtype=torch.bfloat16) * 0.05)(F, D) * (2.0 / F) ** 0.5),
    }

def reference(x, w1, w3, w2):
    gate = torch.einsum("bsd,df->bsf", x, w1)
    up = torch.einsum("bsd,df->bsf", x, w3)
    h = _silu(gate) * up
    out = torch.einsum("bsf,fd->bsd", h, w2)
    return out
```

```python
import sys, json

NAME = "standalone__glu_gated_swiglu__prompt"
HDR = """; Kernarg layout for this problem (56 bytes, ptrs only, base s[0:1]):
"""

class E:
    def __init__(self):
        self.l = []
    def __call__(self, s):
        self.l.append("    " + s)
    def label(self, s):
        self.l.append(s + ":")
    def raw(self, s):
        self.l.append(s)
    def text(self):
        return "\n".join(self.l) + "\n"

def kd(name, vgpr, sgpr, accum):
    return f""".section .rodata,"a"
.p2align 6
.amdhsa_kernel {name}
  .amdhsa_next_free_vgpr {vgpr}
  .amdhsa_next_free_sgpr {sgpr}
  .amdhsa_accum_offset {accum}
  .amdhsa_group_segment_fixed_size 0
  .amdhsa_kernarg_size 56
  .amdhsa_user_sgpr_count 2
  .amdhsa_user_sgpr_kernarg_segment_ptr 1
  .amdhsa_system_sgpr_workgroup_id_x 1
  .amdhsa_float_denorm_mode_32 3
.end_amdhsa_kernel
"""

def srd(e, d, b, nbytes):
    e(f"s_mov_b32 s{d}, s{b}")
    e(f"s_and_b32 s{d+1}, s{b+1}, 0xffff")
    e(f"s_mov_b32 s{d+2}, {nbytes}")
    e(f"s_mov_b32 s{d+3}, 0x00020000")

def interleave(e, mfmas, fill):
    for s in fill.get(-1, []):
        e(s)
    for i, m in enumerate(mfmas):
        e(m)
        for s in fill.get(i, []):
            e(s)

def k1(e, P):
    n = "k1_kernel"
    e.raw(f".globl {n}\n.p2align 8\n.type {n},@function")
    e.label(n)
    SX, SW1, SW3, SH = 16, 20, 24, 28
    sWAVE, sMT, sFT = 32, 33, 34
    sXk, sXk2, sWk = 35, 36, 37
    sXr, sXn, sXd, sWd, sCNT, sT = 38, 39, 40, 41, 42, 43
    sC1, sC2 = 44, 46
    sO = 48
    vX = [1, 2, 3, 4]
    vG0, vG1, vU0, vU1 = 5, 6, 7, 8
    vXl = [9, 10, 11, 12]
    vXa, vWa = 13, 14
    vL = 15
    vT = 16
    ACC = 32
    def acc(ft, mt): return ACC + (ft * 2 + mt) * 16
    def fx(st, mt): return st * 36 + mt * 4
    def fw(st, ft): return st * 36 + 8 + ft * 4
    XBASE = 65536
    e("s_cmp_ge_u32 s2, 256")
    e("s_cbranch_scc1 k1_done")
    e("s_load_dwordx4 s[4:7], s[0:1], 0")
    e("s_load_dwordx2 s[8:9], s[0:1], 16")
    e("s_load_dwordx2 s[12:13], s[0:1], 48")
    e(f"v_lshrrev_b32 v{vT}, 6, v0")
    e(f"v_and_b32 v{vL}, 63, v0")
    e(f"v_readfirstlane_b32 s{sWAVE}, v{vT}")
    e(f"s_and_b32 s{sT}, s2, 7")
    e(f"s_lshr_b32 s3, s2, 3")
    e(f"s_and_b32 s{sMT}, s{sT}, 1")
    e(f"s_lshl_b32 s{sMT}, s{sMT}, 2")
    e(f"s_and_b32 s{sFT}, s3, 3")
    e(f"s_add_u32 s{sMT}, s{sMT}, s{sFT}")
    e(f"s_lshr_b32 s{sFT}, s{sT}, 1")
    e(f"s_lshl_b32 s{sFT}, s{sFT}, 3")
    e(f"s_lshr_b32 s3, s3, 2")
    e(f"s_add_u32 s{sFT}, s{sFT}, s3")
    a, b, c, t = vT, vT + 1, vT + 2, vT + 3
    e(f"v_lshrrev_b32 v{a}, 3, v{vL}")
    e(f"v_and_b32 v{b}, 7, v{vL}")
    e(f"v_lshrrev_b32 v{c}, 4, v{vL}")
    e(f"v_xor_b32 v{t}, v{b}, v{c}")
    e(f"v_lshlrev_b32 v{t}, 4, v{t}")
    e(f"v_lshl_add_u32 v{vX[0]}, v{a}, 11, v{t}")
    e(f"v_xor_b32 v{t}, 64, v{t}")
    e(f"v_lshl_add_u32 v{vX[1]}, v{a}, 11, v{t}")
    e(f"v_add_u32 v{vX[1]}, {8*2048-1024}, v{vX[1]}")
    e(f"v_add_u32 v{vX[2]}, {16*2048-2048}, v{vX[0]}")
    e(f"v_add_u32 v{vX[3]}, {16*2048-2048}, v{vX[1]}")
    def wv(dst, lsrc):
        e(f"v_mul_u32_u24 v{a}, 37, v{lsrc}")
        e(f"v_lshrrev_b32 v{a}, 9, v{a}")
        e(f"v_mul_u32_u24 v{b}, 14, v{a}")
        e(f"v_sub_u32 v{b}, v{lsrc}, v{b}")
        e(f"v_mul_u32_u24 v{a}, 7168, v{a}")
        e(f"v_lshl_add_u32 v{dst}, v{b}, 4, v{a}")
    wv(vG0, vL)
    e(f"v_mov_b32 v{t}, 0x40000000")
    e(f"v_cmp_gt_u32 vcc, 56, v{vL}")
    e(f"v_subrev_u32 v{c}, 8, v{vL}")
    e(f"v_and_b32 v{c}, 63, v{c}")
    e(f"v_cndmask_b32 v{vG0}, v{t}, v{vG0}, vcc")
    wv(vU0, c)
    e(f"v_cmp_lt_u32 vcc, 7, v{vL}")
    e(f"v_add_u32 v{vG1}, {4*7168-1024}, v{vG0}")
    e("s_nop 0")
    e(f"v_cndmask_b32 v{vU0}, v{t}, v{vU0}, vcc")
    e(f"v_add_u32 v{vU1}, {4*7168-1024}, v{vU0}")
    e(f"s_lshl_b32 s{sXk}, s{sMT}, 19")
    e(f"s_lshl_b32 s{sT}, s{sWAVE}, 17")
    e(f"s_add_u32 s{sXk}, s{sXk}, s{sT}")
    e(f"s_add_u32 s{sXk2}, s{sXk}, 65536")
    e(f"s_mul_i32 s{sWk}, s{sWAVE}, {8*7168}")
    e(f"s_mul_i32 s{sT}, s{sFT}, 224")
    e(f"s_add_u32 s{sWk}, s{sWk}, s{sT}")
    e(f"s_lshl_b32 s{sT}, s{sWAVE}, 13")
    e(f"s_add_u32 s{sXr}, s{sT}, {XBASE}")
    e(f"s_add_u32 s{sXn}, s{sT}, {XBASE+32768}")
    e(f"s_add_u32 s{sXd}, s{sT}, {XBASE+65536}")
    e(f"s_lshl_b32 s{sWd}, s{sWAVE}, 12")
    e("s_waitcnt lgkmcnt(0)")
    srd(e, SX, 4, 2048 * 1024 * 2)
    srd(e, SW1, 6, 1024 * 3584 * 2)
    srd(e, SW3, 8, 1024 * 3584 * 2)
    srd(e, SH, 12, 2048 * 3584 * 2)
    LD = P.get("ldflag1", "")
    def xdma(sdst, add, half):
        r = []
        if add: r.append(f"s_add_u32 m0, s{sdst}, {add}")
        else: r.append(f"s_mov_b32 m0, s{sdst}")
        so = sXk2 if half else sXk
        L = [f"buffer_load_dwordx4 v{vX[p]}, s[{SX}:{SX+3}], s{so} offen offset:{1024*p} {LD} lds" for p in range(4)]
        return r, L, [f"s_add_u32 s{so}, s{so}, 128"]
    def wdma(add):
        m0a = f"s_add_u32 m0, s{sWd}, {add}" if add else f"s_mov_b32 m0, s{sWd}"
        m0b = f"s_add_u32 m0, s{sWd}, {add+2048}"
        L = [f"buffer_load_dwordx4 v{vG0}, s[{SW1}:{SW1+3}], s{sWk} offen {LD} lds",
             f"buffer_load_dwordx4 v{vG1}, s[{SW1}:{SW1+3}], s{sWk} offen offset:1024 {LD} lds",
             f"buffer_load_dwordx4 v{vU0}, s[{SW3}:{SW3+3}], s{sWk} offen {LD} lds",
             f"buffer_load_dwordx4 v{vU1}, s[{SW3}:{SW3+3}], s{sWk} offen offset:1024 {LD} lds"]
        return m0a, m0b, L, f"s_add_u32 s{sWk}, s{sWk}, {32*7168}"
    def emit_x(sdst, add, half):
        r, L, post = xdma(sdst, add, half)
        for s in r: e(s)
        e("s_nop 0")
        for s in L + post: e(s)
    def emit_w(add):
        m0a, m0b, L, post = wdma(add)
        e(m0a); e("s_nop 0"); e(L[0]); e(L[1]); e(m0b); e("s_nop 0"); e(L[2]); e(L[3]); e(post)
    emit_x(sXr, 0, 0)
    emit_w(0)
    emit_x(sXr, 4096, 1)
    emit_w(16384)
    emit_x(sXn, 0, 0)
    emit_w(32768)
    emit_x(sXn, 4096, 1)
    emit_w(49152)
    e(f"v_and_b32 v{a}, 31, v{vL}")
    e(f"v_lshrrev_b32 v{b}, 5, v{vL}")
    e(f"v_bfe_u32 v{c}, v{vL}, 1, 3")
    e(f"v_xor_b32 v{c}, v{c}, v{b}")
    e(f"v_lshlrev_b32 v{c}, 4, v{c}")
    e(f"v_lshl_add_u32 v{vXl[0]}, v{a}, 7, v{c}")
    for ks in range(1, 4):
        e(f"v_xor_b32 v{vXl[ks]}, {ks*32}, v{vXl[0]}")
    e(f"v_lshlrev_b32 v{vWa}, 12, v{b}")
    e(f"v_bfe_u32 v{c}, v{vL}, 4, 1")
    e(f"v_mul_u32_u24 v{c}, 2176, v{c}")
    e(f"v_add_u32 v{vWa}, v{vWa}, v{c}")
    e(f"v_bfe_u32 v{c}, v{vL}, 2, 2")
    e(f"v_mul_u32_u24 v{c}, 224, v{c}")
    e(f"v_add_u32 v{vWa}, v{vWa}, v{c}")
    e(f"v_and_b32 v{c}, 3, v{vL}")
    e(f"v_lshl_add_u32 v{vWa}, v{c}, 3, v{vWa}")
    e(f"v_add_u32 v{vXa}, s{sXr}, v{vXl[0]}")
    for r in range(ACC, 256):
        e(f"v_mov_b32 v{r}, 0")
    e(f"s_mov_b32 s{sCNT}, 14")
    e(f"s_mov_b32 s{sC1}, 0xbfb8aa3b")
    e(f"s_mov_b32 s{sC1+1}, 0xbfb8aa3b")
    e(f"s_mov_b32 s{sC2}, 1.0")
    e(f"s_mov_b32 s{sC2+1}, 1.0")
    def reads(st, woff):
        R = []
        def X(mt): return f"ds_read_b128 a[{fx(st,mt)}:{fx(st,mt)+3}], v{vXa} offset:{mt*4096}"
        def W(ft, i): return f"ds_read_b64_tr_b16 a[{fw(st,ft)+2*i}:{fw(st,ft)+2*i+1}], v{vWa} offset:{woff+i*1024+ft*32}"
        R = [X(0), W(0, 0), W(0, 1), X(1)]
        for ft in range(1, 7):
            R += [W(ft, 0), W(ft, 1)]
        return R
    def mf(st):
        return [f"v_mfma_f32_32x32x16_bf16 v[{acc(ft,mt)}:{acc(ft,mt)+15}], a[{fw(st,ft)}:{fw(st,ft)+3}], a[{fx(st,mt)}:{fx(st,mt)+3}], v[{acc(ft,mt)}:{acc(ft,mt)+15}]"
                for ft in range(7) for mt in range(2)]
    e("s_waitcnt vmcnt(20)")
    e("s_barrier")
    for s in reads(0, 0): e(s)
    e(f"v_add_u32 v{vXa}, s{sXr}, v{vXl[1]}")
    e("s_waitcnt lgkmcnt(0)")
    DP = P.get("dmapos", [8, 9, 10, 11])
    def phase(st, R, pre, dm0, dL, post, nxt):
        fill = {}
        def add(i, s): fill.setdefault(i, []).append(s)
        for s in pre: add(-1, s)
        for i, s in enumerate(R): add(i // 2, s)
        for s in nxt: add(8, s)
        for j, s in enumerate(dL):
            if j in dm0: add(DP[j] - 1, dm0[j])
            add(DP[j], s)
        for s in post: add(12, s)
        interleave(e, mf(st), fill)
    def body(dma, vm0, vm1, last):
        if dma:
            r, L, post = xdma(sXd, 0, 0); d = ({0: r[0]}, L, post)
        else: d = ({}, [], [])
        phase(0, reads(1, 8192), [], d[0], d[1], d[2], [f"v_add_u32 v{vXa}, s{sXr}, v{vXl[2]}"])
        e(f"s_waitcnt vmcnt({vm0}) lgkmcnt(0)")
        e("s_barrier")
        if dma:
            m0a, m0b, L, post = wdma(0); d = ({0: m0a, 2: m0b}, L, [post])
        phase(1, reads(0, 16384), [], d[0], d[1], d[2], [f"v_add_u32 v{vXa}, s{sXr}, v{vXl[3]}"])
        e("s_waitcnt lgkmcnt(0)")
        if dma:
            r, L, post = xdma(sXd, 4096, 1); d = ({0: r[0]}, L, post)
        phase(0, reads(1, 16384 + 8192), [], d[0], d[1], d[2],
              [f"v_add_u32 v{vXa}, s{sXn}, v{vXl[0]}", f"v_xor_b32 v{vWa}, 0x8000, v{vWa}"])
        if last:
            e("s_waitcnt lgkmcnt(0)")
            phase(1, [], [], {}, [], [], [])
            return
        e(f"s_waitcnt vmcnt({vm1}) lgkmcnt(0)")
        e("s_barrier")
        rot = [f"s_mov_b32 s{sT}, s{sXr}", f"s_mov_b32 s{sXr}, s{sXn}", f"s_mov_b32 s{sXn}, s{sXd}", f"s_mov_b32 s{sXd}, s{sT}"]
        if dma:
            m0a, m0b, L, post = wdma(16384)
            d = ({0: m0a, 2: m0b}, L, [post, f"s_xor_b32 s{sWd}, s{sWd}, 0x8000"] + rot)
        else:
            d = ({}, [], rot)
        phase(1, reads(0, 0), [], d[0], d[1], d[2], [f"v_add_u32 v{vXa}, s{sXn}, v{vXl[1]}"])
    e.raw(".p2align 6")
    e.label("k1_loop")
    body(True, 16, 16, False)
    e(f"s_sub_u32 s{sCNT}, s{sCNT}, 1")
    e(f"s_cmp_lg_u32 s{sCNT}, 0")
    e("s_waitcnt lgkmcnt(0)")
    e("s_cbranch_scc1 k1_loop")
    body(False, 12, 4, False)
    e("s_waitcnt lgkmcnt(0)")
    body(False, 0, 0, True)
    e(f"s_lshl_b32 s{sT}, s{sMT}, 3")
    e(f"s_lshl_b32 s3, s{sWAVE}, 1")
    e(f"s_add_u32 s{sT}, s{sT}, s3")
    e(f"s_mul_i32 s{sO}, s{sT}, {224*1024}")
    e(f"s_mul_i32 s3, s{sFT}, 7168")
    e(f"s_add_u32 s{sO}, s{sO}, s3")
    e(f"s_add_u32 s{sO+1}, s{sO}, 4096")
    e(f"s_add_u32 s{sO+2}, s{sO}, {224*1024}")
    e(f"s_add_u32 s{sO+3}, s{sO}, {224*1024+4096}")
    e(f"v_lshlrev_b32 v{vL}, 4, v{vL}")
    e("s_nop 7")
    ST = P.get("stflag1", "")
    for ft in range(7):
        for mt in range(2):
            A = acc(ft, mt)
            T = vT + 8 * (mt & 1)
            for j in range(4): e(f"v_pk_mul_f32 v[{T+2*j}:{T+2*j+1}], v[{A+2*j}:{A+2*j+1}], s[{sC1}:{sC1+1}]")
            for j in range(8): e(f"v_exp_f32 v{T+j}, v{T+j}")
            for j in range(4): e(f"v_pk_add_f32 v[{T+2*j}:{T+2*j+1}], v[{T+2*j}:{T+2*j+1}], s[{sC2}:{sC2+1}]")
            for j in range(8): e(f"v_rcp_f32 v{T+j}, v{T+j}")
            for j in range(4): e(f"v_pk_mul_f32 v[{T+2*j}:{T+2*j+1}], v[{T+2*j}:{T+2*j+1}], v[{A+2*j}:{A+2*j+1}]")
            for j in range(4): e(f"v_pk_mul_f32 v[{T+2*j}:{T+2*j+1}], v[{T+2*j}:{T+2*j+1}], v[{A+8+2*j}:{A+8+2*j+1}]")
            for j in range(4): e(f"v_cvt_pk_bf16_f32 v{A+j}, v{T+2*j}, v{T+2*j+1}")
            so = sO + 2 * mt + (1 if ft >= 4 else 0)
            e(f"buffer_store_dwordx4 v[{A}:{A+3}], v{vL}, s[{SH}:{SH+3}], s{so} offen offset:{(ft%4)*1024} {ST}")
    e.label("k1_done")
    e("s_endpgm")
    return kd(n, 256 + 72, 64, 256)

def k2(e, P):
    n = "k2_kernel"
    e.raw(f".globl {n}\n.p2align 8\n.type {n},@function")
    e.label(n)
    SW2, SH, SO = 16, 20, 24
    sWAVE, sMT, sNT, sWk, sHk, sWd, sCNT, sT = 32, 33, 34, 35, 36, 37, 38, 39
    vD0, vD1, vHo, vA0, vA1, vL, vT = 1, 2, 3, 4, 5, 6, 8
    ACC = 16
    WF = 48
    HR = 112
    def wf(st, j, t): return WF + st * 32 + (j * 2 + t) * 4
    def hr(s, j): return HR + (s % 8) * 16 + j * 4
    e("s_cmp_ge_u32 s2, 256")
    e("s_cbranch_scc1 k2_done")
    e("s_load_dwordx4 s[4:7], s[0:1], 24")
    e("s_load_dwordx2 s[12:13], s[0:1], 48")
    e(f"v_lshrrev_b32 v{vT}, 6, v0")
    e(f"v_and_b32 v{vL}, 63, v0")
    e(f"v_readfirstlane_b32 s{sWAVE}, v{vT}")
    e(f"s_and_b32 s{sT}, s2, 7")
    e(f"s_lshr_b32 s3, s2, 3")
    e(f"s_lshr_b32 s{sMT}, s{sT}, 1")
    e(f"s_lshl_b32 s{sMT}, s{sMT}, 2")
    e(f"s_and_b32 s{sNT}, s3, 3")
    e(f"s_add_u32 s{sMT}, s{sMT}, s{sNT}")
    e(f"s_and_b32 s{sNT}, s{sT}, 1")
    e(f"s_lshl_b32 s{sNT}, s{sNT}, 3")
    e(f"s_lshr_b32 s3, s3, 2")
    e(f"s_add_u32 s{sNT}, s{sNT}, s3")
    a, b, c, t = vT, vT + 1, vT + 2, vT + 3
    e(f"v_lshrrev_b32 v{a}, 3, v{vL}")
    e(f"v_and_b32 v{b}, 7, v{vL}")
    e(f"v_bfe_u32 v{c}, v{vL}, 4, 1")
    e(f"v_lshlrev_b32 v{c}, 1, v{c}")
    e(f"v_xor_b32 v{b}, v{b}, v{c}")
    e(f"v_lshlrev_b32 v{b}, 4, v{b}")
    e(f"v_lshl_add_u32 v{vD0}, v{a}, 11, v{b}")
    e(f"v_add_u32 v{vD1}, {8*2048-1024}, v{vD0}")
    e(f"v_lshlrev_b32 v{vHo}, 4, v{vL}")
    e(f"s_lshl_b32 s{sWk}, s{sWAVE}, 15")
    e(f"s_lshl_b32 s{sT}, s{sNT}, 7")
    e(f"s_add_u32 s{sWk}, s{sWk}, s{sT}")
    e(f"s_lshl_b32 s{sT}, s{sMT}, 2")
    e(f"s_add_u32 s{sT}, s{sT}, s{sWAVE}")
    e(f"s_mul_i32 s{sHk}, s{sT}, {224*1024}")
    e(f"s_lshl_b32 s{sWd}, s{sWAVE}, 11")
    e("s_waitcnt lgkmcnt(0)")
    srd(e, SW2, 4, 3584 * 1024 * 2)
    srd(e, SO, 6, 2048 * 1024 * 2)
    srd(e, SH, 12, 2048 * 3584 * 2)
    LDW = P.get("ldflag2w", "")
    LDH = P.get("ldflag2h", "")
    def dma(s):
        m = f"s_add_u32 m0, s{sWd}, {(s%8)*8192}" if s % 8 else f"s_mov_b32 m0, s{sWd}"
        return m, [f"buffer_load_dwordx4 v{vD0}, s[{SW2}:{SW2+3}], s{sWk} offen {LDW} lds",
                   f"buffer_load_dwordx4 v{vD1}, s[{SW2}:{SW2+3}], s{sWk} offen offset:1024 {LDW} lds"], f"s_add_u32 s{sWk}, s{sWk}, {64*2048}"
    def hld(s):
        return [f"buffer_load_dwordx4 v[{hr(s,j)}:{hr(s,j)+3}], v{vHo}, s[{SH}:{SH+3}], s{sHk} offen offset:{1024*j} {LDH}" for j in range(4)], f"s_add_u32 s{sHk}, s{sHk}, 4096"
    m, L, p = dma(0); e(m); e("s_nop 0"); [e(x) for x in L]; e(p)
    for s in range(-7, 0):
        m, L, p = dma(s + 8); e(m); e("s_nop 0"); [e(x) for x in L]; e(p)
        L, p = hld(s + 7); [e(x) for x in L]; e(p)
    e(f"v_lshrrev_b32 v{a}, 5, v{vL}")
    e(f"v_bfe_u32 v{b}, v{vL}, 2, 2")
    e(f"v_lshl_add_u32 v{a}, v{a}, 2, v{b}")
    e(f"v_lshlrev_b32 v{vA0}, 7, v{a}")
    e(f"v_and_b32 v{c}, 1, v{vL}")
    e(f"v_lshl_add_u32 v{vA0}, v{c}, 6, v{vA0}")
    e(f"v_bfe_u32 v{c}, v{vL}, 3, 1")
    e(f"v_lshl_add_u32 v{vA0}, v{c}, 5, v{vA0}")
    e(f"v_bfe_u32 v{c}, v{vL}, 4, 1")
    e(f"v_lshl_add_u32 v{vA0}, v{c}, 4, v{vA0}")
    e(f"v_bfe_u32 v{c}, v{vL}, 1, 1")
    e(f"v_lshl_add_u32 v{vA0}, v{c}, 3, v{vA0}")
    e(f"v_xor_b32 v{vA1}, 32, v{vA0}")
    for r in range(ACC, ACC + 32): e(f"v_mov_b32 v{r}, 0")
    e(f"s_mov_b32 s{sCNT}, 6")
    def reads(s):
        st = s % 2
        R = []
        for j in range(4):
            for t in range(2):
                for i in range(2):
                    R.append(f"ds_read_b64_tr_b16 v[{wf(st,j,t)+2*i}:{wf(st,j,t)+2*i+1}], v{vA1 if t else vA0} offset:{(s%8)*8192+(16*j+8*i)*128}")
        return R
    def mf(s):
        st = s % 2
        return [f"v_mfma_f32_32x32x16_bf16 v[{ACC+16*t}:{ACC+16*t+15}], v[{wf(st,j,t)}:{wf(st,j,t)+3}], v[{hr(s,j)}:{hr(s,j)+3}], v[{ACC+16*t}:{ACC+16*t+15}]"
                for j in range(4) for t in range(2)]
    e("s_waitcnt vmcnt(42)")
    e("s_barrier")
    for x in reads(0): e(x)
    def step(s, vm, dD, dH, rd):
        e(f"s_waitcnt vmcnt({vm}) lgkmcnt(0)")
        if rd: e("s_barrier")
        fill = {}
        def add(i, x): fill.setdefault(i, []).append(x)
        V = []
        if dD:
            m, L, p = dma(s + 8)
            add(-1, m)
            V += L + [p]
        if dH:
            L, p = hld(s + 7)
            V += L + [p]
        R = reads(s + 1) if rd else []
        for i, x in enumerate(R): add(i // 3, x)
        for i, x in enumerate(V): add(i, x)
        interleave(e, mf(s), fill)
    e.raw(".p2align 6")
    e.label("k2_loop")
    for s in range(8): step(s, 36, True, True, True)
    e(f"s_sub_u32 s{sCNT}, s{sCNT}, 1")
    e(f"s_cmp_lg_u32 s{sCNT}, 0")
    e("s_cbranch_scc1 k2_loop")
    cnt = {s: 6 for s in range(40, 48)}; cnt[48] = 4
    for s in range(49, 56): cnt[s] = 0
    for s in range(48, 56):
        vm = sum(cnt[q] for q in range(s - 6, s))
        step(s, vm, False, s == 48, s < 55)
    e(f"s_lshl_b32 s{sT}, s{sMT}, 2")
    e(f"s_add_u32 s{sT}, s{sT}, s{sWAVE}")
    e(f"s_lshl_b32 s{sT}, s{sT}, 16")
    e(f"s_lshl_b32 s3, s{sNT}, 7")
    e(f"s_add_u32 s{sT}, s{sT}, s3")
    e(f"v_and_b32 v{a}, 31, v{vL}")
    e(f"v_lshrrev_b32 v{b}, 5, v{vL}")
    e(f"v_lshlrev_b32 v{b}, 6, v{b}")
    e(f"v_lshl_add_u32 v{a}, v{a}, 11, v{b}")
    e("s_nop 7")
    for t in range(2):
        for j in range(8):
            e(f"v_cvt_pk_bf16_f32 v{WF+8*t+j}, v{ACC+16*t+2*j}, v{ACC+16*t+2*j+1}")
        for q in range(2):
            e(f"buffer_store_dwordx4 v[{WF+8*t+4*q}:{WF+8*t+4*q+3}], v{a}, s[{SO}:{SO+3}], s{sT} offen offset:{32*t+16*q}")
    e.label("k2_done")
    e("s_endpgm")
    return kd(n, 240, 64, 240)

def gen(P):
    e = E()
    e.raw(HDR + "; @launch kernel=k1_kernel grid=(256,1,1) block=(256,1,1) lds=163840\n"
          "; @launch kernel=k2_kernel grid=(256,1,1) block=(256,1,1) lds=65536")
    e.raw('.amdgcn_target "amdgcn-amd-amdhsa--gfx950"\n.text')
    d1 = k1(e, P)
    d2 = k2(e, P)
    return e.text() + d1 + d2

if __name__ == "__main__":
    out = sys.argv[1]
    P = json.loads(sys.argv[2]) if len(sys.argv) > 2 else {}
    open(out, "w").write(gen(P))
```

```python
import sys, json

NAME = "standalone__glu_gated_swiglu__prompt"
HDR = """; Kernarg layout for this problem (56 bytes, ptrs only, base s[0:1]):
"""

class E:
    def __init__(self):
        self.l = []
    def __call__(self, s):
        self.l.append("    " + s)
    def label(self, s):
        self.l.append(s + ":")
    def raw(self, s):
        self.l.append(s)
    def text(self):
        return "\n".join(self.l) + "\n"

def kd(name, vgpr, sgpr, accum):
    return f""".section .rodata,"a"
.p2align 6
.amdhsa_kernel {name}
  .amdhsa_next_free_vgpr {vgpr}
  .amdhsa_next_free_sgpr {sgpr}
  .amdhsa_accum_offset {accum}
  .amdhsa_group_segment_fixed_size 0
  .amdhsa_kernarg_size 56
  .amdhsa_user_sgpr_count 2
  .amdhsa_user_sgpr_kernarg_segment_ptr 1
  .amdhsa_system_sgpr_workgroup_id_x 1
  .amdhsa_float_denorm_mode_32 3
.end_amdhsa_kernel
"""

def srd(e, d, b, nbytes):
    e(f"s_mov_b32 s{d}, s{b}")
    e(f"s_and_b32 s{d+1}, s{b+1}, 0xffff")
    e(f"s_mov_b32 s{d+2}, {nbytes}")
    e(f"s_mov_b32 s{d+3}, 0x00020000")

def stamp(e, P, i, real=False, mode=1):
    if P.get("stamp") == 3 and mode == 1:
        e(f"s_memrealtime s[{64+2*i}:{65+2*i}]")
        return
    if P.get("stamp") and (P.get("stamp") == mode or i in (0, 6, 7)):
        e(f"s_memrealtime s[{64+2*i}:{65+2*i}]" if real else f"s_memtime s[{64+2*i}:{65+2*i}]")

def dump_stamps(e, P, n, kidx, sWAVE, ws):
    if not P.get("stamp"): return
    e("s_waitcnt lgkmcnt(0)")
    srd(e, 92, ws, 0x10000000)
    e(f"s_lshl_b32 s96, s2, 2")
    e(f"s_add_u32 s96, s96, s{sWAVE}")
    e(f"s_lshl_b32 s96, s96, 7")
    e(f"s_add_u32 s96, s96, {(128<<20) + kidx*(1<<20)}")
    e("v_mov_b32 v1, 0")
    for i in range(2*n):
        e(f"v_mov_b32 v2, s{64+i}")
        e(f"buffer_store_dword v2, v1, s[92:95], s96 offen offset:{4*i}")
        e("s_nop 1")

def interleave(e, mfmas, fill):
    for s in fill.get(-1, []):
        e(s)
    for i, m in enumerate(mfmas):
        e(m)
        for s in fill.get(i, []):
            e(s)

def k1(e, P):
    n = "k1_kernel"
    e.raw(f".globl {n}\n.p2align 8\n.type {n},@function")
    e.label(n)
    SX, SW1, SW3, SH = 16, 20, 24, 28
    sWAVE, sMT, sFT = 32, 33, 34
    sXk, sXk2, sWk = 35, 36, 37
    sXr, sXn, sXd, sWd, sCNT, sT = 38, 39, 40, 41, 42, 43
    sC1, sC2 = 44, 46
    sO = 48
    vX = [1, 2, 3, 4]
    vG0, vG1, vU0, vU1 = 5, 6, 7, 8
    vXl = [9, 10, 11, 12]
    vXa, vWa = 13, 14
    vL = 15
    vT = 16
    ACC = 32
    def acc(ft, mt): return ACC + (ft * 2 + mt) * 16
    def fx(st, mt): return st * 36 + mt * 4
    def fw(st, ft): return st * 36 + 8 + ft * 4
    XBASE = 65536
    e("s_cmp_ge_u32 s2, 256")
    e("s_cbranch_scc1 k1_done")
    stamp(e, P, 0); stamp(e, P, 6, True)
    e("s_load_dwordx4 s[4:7], s[0:1], 0")
    e("s_load_dwordx2 s[8:9], s[0:1], 16")
    e("s_load_dwordx2 s[12:13], s[0:1], 48")
    e(f"v_lshrrev_b32 v{vT}, 6, v0")
    e(f"v_and_b32 v{vL}, 63, v0")
    e(f"v_readfirstlane_b32 s{sWAVE}, v{vT}")
    e(f"s_and_b32 s{sT}, s2, 7")
    e(f"s_lshr_b32 s3, s2, 3")
    e(f"s_and_b32 s{sMT}, s{sT}, 1")
    e(f"s_lshl_b32 s{sMT}, s{sMT}, 2")
    e(f"s_and_b32 s{sFT}, s3, 3")
    e(f"s_add_u32 s{sMT}, s{sMT}, s{sFT}")
    e(f"s_lshr_b32 s{sFT}, s{sT}, 1")
    e(f"s_lshl_b32 s{sFT}, s{sFT}, 3")
    e(f"s_lshr_b32 s3, s3, 2")
    e(f"s_add_u32 s{sFT}, s{sFT}, s3")
    a, b, c, t = vT, vT + 1, vT + 2, vT + 3
    e(f"v_lshrrev_b32 v{a}, 3, v{vL}")
    e(f"v_and_b32 v{b}, 7, v{vL}")
    e(f"v_lshrrev_b32 v{c}, 4, v{vL}")
    e(f"v_xor_b32 v{t}, v{b}, v{c}")
    e(f"v_lshlrev_b32 v{t}, 4, v{t}")
    e(f"v_lshl_add_u32 v{vX[0]}, v{a}, 11, v{t}")
    e(f"v_xor_b32 v{t}, 64, v{t}")
    e(f"v_lshl_add_u32 v{vX[1]}, v{a}, 11, v{t}")
    e(f"v_add_u32 v{vX[1]}, {8*2048-1024}, v{vX[1]}")
    e(f"v_add_u32 v{vX[2]}, {16*2048-2048}, v{vX[0]}")
    e(f"v_add_u32 v{vX[3]}, {16*2048-2048}, v{vX[1]}")
    def wv(dst, lsrc):
        e(f"v_mul_u32_u24 v{a}, 37, v{lsrc}")
        e(f"v_lshrrev_b32 v{a}, 9, v{a}")
        e(f"v_mul_u32_u24 v{b}, 14, v{a}")
        e(f"v_sub_u32 v{b}, v{lsrc}, v{b}")
        e(f"v_mul_u32_u24 v{a}, 7168, v{a}")
        e(f"v_lshl_add_u32 v{dst}, v{b}, 4, v{a}")
    wv(vG0, vL)
    e(f"v_mov_b32 v{t}, 0x40000000")
    e(f"v_cmp_gt_u32 vcc, 56, v{vL}")
    e(f"v_subrev_u32 v{c}, 8, v{vL}")
    e(f"v_and_b32 v{c}, 63, v{c}")
    e(f"v_cndmask_b32 v{vG0}, v{t}, v{vG0}, vcc")
    wv(vU0, c)
    e(f"v_cmp_lt_u32 vcc, 7, v{vL}")
    e(f"v_add_u32 v{vG1}, {4*7168-1024}, v{vG0}")
    e("s_nop 0")
    e(f"v_cndmask_b32 v{vU0}, v{t}, v{vU0}, vcc")
    e(f"v_add_u32 v{vU1}, {4*7168-1024}, v{vU0}")
    e(f"s_lshl_b32 s{sXk}, s{sMT}, 19")
    e(f"s_lshl_b32 s{sT}, s{sWAVE}, 17")
    e(f"s_add_u32 s{sXk}, s{sXk}, s{sT}")
    e(f"s_add_u32 s{sXk2}, s{sXk}, 65536")
    e(f"s_mul_i32 s{sWk}, s{sWAVE}, {8*7168}")
    e(f"s_mul_i32 s{sT}, s{sFT}, 224")
    e(f"s_add_u32 s{sWk}, s{sWk}, s{sT}")
    e(f"s_lshl_b32 s{sT}, s{sWAVE}, 13")
    e(f"s_add_u32 s{sXr}, s{sT}, {XBASE}")
    e(f"s_add_u32 s{sXn}, s{sT}, {XBASE+32768}")
    e(f"s_add_u32 s{sXd}, s{sT}, {XBASE+65536}")
    e(f"s_lshl_b32 s{sWd}, s{sWAVE}, 12")
    e("s_waitcnt lgkmcnt(0)")
    stamp(e, P, 1, mode=2)
    srd(e, SX, 4, 2048 * 1024 * 2)
    srd(e, SW1, 6, 1024 * 3584 * 2)
    srd(e, SW3, 8, 1024 * 3584 * 2)
    srd(e, SH, 12, 2048 * 3584 * 2)
    LD = P.get("ldflag1", "")
    def xdma(sdst, add, half):
        r = []
        if add: r.append(f"s_add_u32 m0, s{sdst}, {add}")
        else: r.append(f"s_mov_b32 m0, s{sdst}")
        so = sXk2 if half else sXk
        L = [f"buffer_load_dwordx4 v{vX[p]}, s[{SX}:{SX+3}], s{so} offen offset:{1024*p} {LD} lds" for p in range(4)]
        return r, L, [f"s_add_u32 s{so}, s{so}, 128"]
    def wdma(add):
        m0a = f"s_add_u32 m0, s{sWd}, {add}" if add else f"s_mov_b32 m0, s{sWd}"
        m0b = f"s_add_u32 m0, s{sWd}, {add+2048}"
        L = [f"buffer_load_dwordx4 v{vG0}, s[{SW1}:{SW1+3}], s{sWk} offen {LD} lds",
             f"buffer_load_dwordx4 v{vG1}, s[{SW1}:{SW1+3}], s{sWk} offen offset:1024 {LD} lds",
             f"buffer_load_dwordx4 v{vU0}, s[{SW3}:{SW3+3}], s{sWk} offen {LD} lds",
             f"buffer_load_dwordx4 v{vU1}, s[{SW3}:{SW3+3}], s{sWk} offen offset:1024 {LD} lds"]
        return m0a, m0b, L, f"s_add_u32 s{sWk}, s{sWk}, {32*7168}"
    def emit_x(sdst, add, half):
        r, L, post = xdma(sdst, add, half)
        for s in r: e(s)
        e("s_nop 0")
        for s in L + post: e(s)
    def emit_w(add):
        m0a, m0b, L, post = wdma(add)
        e(m0a); e("s_nop 0"); e(L[0]); e(L[1]); e(m0b); e("s_nop 0"); e(L[2]); e(L[3]); e(post)
    emit_x(sXr, 0, 0)
    emit_w(0)
    emit_x(sXr, 4096, 1)
    emit_w(16384)
    emit_x(sXn, 0, 0)
    emit_w(32768)
    emit_x(sXn, 4096, 1)
    emit_w(49152)
    stamp(e, P, 2, mode=2)
    e(f"v_and_b32 v{a}, 31, v{vL}")
    e(f"v_lshrrev_b32 v{b}, 5, v{vL}")
    e(f"v_bfe_u32 v{c}, v{vL}, 1, 3")
    e(f"v_xor_b32 v{c}, v{c}, v{b}")
    e(f"v_lshlrev_b32 v{c}, 4, v{c}")
    e(f"v_lshl_add_u32 v{vXl[0]}, v{a}, 7, v{c}")
    for ks in range(1, 4):
        e(f"v_xor_b32 v{vXl[ks]}, {ks*32}, v{vXl[0]}")
    e(f"v_lshlrev_b32 v{vWa}, 12, v{b}")
    e(f"v_bfe_u32 v{c}, v{vL}, 4, 1")
    e(f"v_mul_u32_u24 v{c}, 2176, v{c}")
    e(f"v_add_u32 v{vWa}, v{vWa}, v{c}")
    e(f"v_bfe_u32 v{c}, v{vL}, 2, 2")
    e(f"v_mul_u32_u24 v{c}, 224, v{c}")
    e(f"v_add_u32 v{vWa}, v{vWa}, v{c}")
    e(f"v_and_b32 v{c}, 3, v{vL}")
    e(f"v_lshl_add_u32 v{vWa}, v{c}, 3, v{vWa}")
    e(f"v_add_u32 v{vXa}, s{sXr}, v{vXl[0]}")
    for r in range(ACC, 256):
        e(f"v_mov_b32 v{r}, 0")
    e(f"s_mov_b32 s{sCNT}, 14")
    e(f"s_mov_b32 s{sC1}, 0xbfb8aa3b")
    e(f"s_mov_b32 s{sC1+1}, 0xbfb8aa3b")
    e(f"s_mov_b32 s{sC2}, 1.0")
    e(f"s_mov_b32 s{sC2+1}, 1.0")
    def reads(st, woff):
        R = []
        def X(mt): return f"ds_read_b128 a[{fx(st,mt)}:{fx(st,mt)+3}], v{vXa} offset:{mt*4096}"
        def W(ft, i): return f"ds_read_b64_tr_b16 a[{fw(st,ft)+2*i}:{fw(st,ft)+2*i+1}], v{vWa} offset:{woff+i*1024+ft*32}"
        R = [X(0), W(0, 0), W(0, 1), X(1)]
        for ft in range(1, 7):
            R += [W(ft, 0), W(ft, 1)]
        return R
    def mf(st):
        return [f"v_mfma_f32_32x32x16_bf16 v[{acc(ft,mt)}:{acc(ft,mt)+15}], a[{fw(st,ft)}:{fw(st,ft)+3}], a[{fx(st,mt)}:{fx(st,mt)+3}], v[{acc(ft,mt)}:{acc(ft,mt)+15}]"
                for ft in range(7) for mt in range(2)]
    stamp(e, P, 3, mode=2)
    e("s_waitcnt vmcnt(20)")
    stamp(e, P, 4, mode=2)
    e("s_barrier")
    stamp(e, P, 5, mode=2)
    stamp(e, P, 1)
    for s in reads(0, 0): e(s)
    e(f"v_add_u32 v{vXa}, s{sXr}, v{vXl[1]}")
    e("s_waitcnt lgkmcnt(0)")
    DP = P.get("dmapos", [8, 9, 10, 11])
    def phase(st, R, pre, dm0, dL, post, nxt):
        fill = {}
        def add(i, s): fill.setdefault(i, []).append(s)
        if P.get("nodma"): dL = []
        if P.get("nolds"): R = []
        for s in pre: add(-1, s)
        for i, s in enumerate(R): add(i // 2, s)
        for s in nxt: add(8, s)
        for j, s in enumerate(dL):
            if j in dm0: add(DP[j] - 1, dm0[j])
            add(DP[j], s)
        for s in post: add(12, s)
        interleave(e, mf(st), fill)
    def body(dma, vm0, vm1, last):
        if dma:
            r, L, post = xdma(sXd, 0, 0); d = ({0: r[0]}, L, post)
        else: d = ({}, [], [])
        phase(0, reads(1, 8192), [], d[0], d[1], d[2], [f"v_add_u32 v{vXa}, s{sXr}, v{vXl[2]}"])
        e(f"s_waitcnt vmcnt({vm0}) lgkmcnt(0)")
        e("s_barrier")
        if dma:
            m0a, m0b, L, post = wdma(0); d = ({0: m0a, 2: m0b}, L, [post])
        phase(1, reads(0, 16384), [], d[0], d[1], d[2], [f"v_add_u32 v{vXa}, s{sXr}, v{vXl[3]}"])
        e("s_waitcnt lgkmcnt(0)")
        if dma:
            r, L, post = xdma(sXd, 4096, 1); d = ({0: r[0]}, L, post)
        phase(0, reads(1, 16384 + 8192), [], d[0], d[1], d[2],
              [f"v_add_u32 v{vXa}, s{sXn}, v{vXl[0]}", f"v_xor_b32 v{vWa}, 0x8000, v{vWa}"])
        if last:
            e("s_waitcnt lgkmcnt(0)")
            phase(1, [], [], {}, [], [], [])
            return
        e(f"s_waitcnt vmcnt({vm1}) lgkmcnt(0)")
        e("s_barrier")
        rot = [f"s_mov_b32 s{sT}, s{sXr}", f"s_mov_b32 s{sXr}, s{sXn}", f"s_mov_b32 s{sXn}, s{sXd}", f"s_mov_b32 s{sXd}, s{sT}"]
        if dma:
            m0a, m0b, L, post = wdma(16384)
            d = ({0: m0a, 2: m0b}, L, [post, f"s_xor_b32 s{sWd}, s{sWd}, 0x8000"] + rot)
        else:
            d = ({}, [], rot)
        phase(1, reads(0, 0), [], d[0], d[1], d[2], [f"v_add_u32 v{vXa}, s{sXn}, v{vXl[1]}"])
    e.raw(".p2align 6")
    e.label("k1_loop")
    body(True, 16, 16, False)
    e(f"s_sub_u32 s{sCNT}, s{sCNT}, 1")
    e(f"s_cmp_lg_u32 s{sCNT}, 0")
    e("s_waitcnt lgkmcnt(0)")
    e("s_cbranch_scc1 k1_loop")
    stamp(e, P, 2)
    body(False, 12, 4, False)
    e("s_waitcnt lgkmcnt(0)")
    body(False, 0, 0, True)
    stamp(e, P, 3)
    e(f"s_lshl_b32 s{sT}, s{sMT}, 3")
    e(f"s_lshl_b32 s3, s{sWAVE}, 1")
    e(f"s_add_u32 s{sT}, s{sT}, s3")
    e(f"s_mul_i32 s{sO}, s{sT}, {224*1024}")
    e(f"s_mul_i32 s3, s{sFT}, 7168")
    e(f"s_add_u32 s{sO}, s{sO}, s3")
    e(f"s_add_u32 s{sO+1}, s{sO}, 4096")
    e(f"s_add_u32 s{sO+2}, s{sO}, {224*1024}")
    e(f"s_add_u32 s{sO+3}, s{sO}, {224*1024+4096}")
    e(f"v_lshlrev_b32 v{vL}, 4, v{vL}")
    e("s_nop 7")
    ST = P.get("stflag1", "")
    for ft in range(7):
        for mt in range(2):
            A = acc(ft, mt)
            T = vT + 8 * (mt & 1)
            for j in range(4): e(f"v_pk_mul_f32 v[{T+2*j}:{T+2*j+1}], v[{A+2*j}:{A+2*j+1}], s[{sC1}:{sC1+1}]")
            for j in range(8): e(f"v_exp_f32 v{T+j}, v{T+j}")
            for j in range(4): e(f"v_pk_add_f32 v[{T+2*j}:{T+2*j+1}], v[{T+2*j}:{T+2*j+1}], s[{sC2}:{sC2+1}]")
            for j in range(8): e(f"v_rcp_f32 v{T+j}, v{T+j}")
            for j in range(4): e(f"v_pk_mul_f32 v[{T+2*j}:{T+2*j+1}], v[{T+2*j}:{T+2*j+1}], v[{A+2*j}:{A+2*j+1}]")
            for j in range(4): e(f"v_pk_mul_f32 v[{T+2*j}:{T+2*j+1}], v[{T+2*j}:{T+2*j+1}], v[{A+8+2*j}:{A+8+2*j+1}]")
            for j in range(4): e(f"v_cvt_pk_bf16_f32 v{A+j}, v{T+2*j}, v{T+2*j+1}")
            so = sO + 2 * mt + (1 if ft >= 4 else 0)
            e(f"buffer_store_dwordx4 v[{A}:{A+3}], v{vL}, s[{SH}:{SH+3}], s{so} offen offset:{(ft%4)*1024} {ST}")
    stamp(e, P, 4)
    if P.get("stamp"): e("s_waitcnt vmcnt(0)")
    stamp(e, P, 5); stamp(e, P, 7, True)
    dump_stamps(e, P, 8, 0, sWAVE, 12)
    e.label("k1_done")
    e("s_endpgm")
    return kd(n, 256 + 72, 100, 256)

def k2(e, P):
    n = "k2_kernel"
    e.raw(f".globl {n}\n.p2align 8\n.type {n},@function")
    e.label(n)
    SW2, SH, SO = 16, 20, 24
    sWAVE, sMT, sNT, sWk, sHk, sWd, sCNT, sT = 32, 33, 34, 35, 36, 37, 38, 39
    vD0, vD1, vHo, vA0, vA1, vL, vT = 1, 2, 3, 4, 5, 6, 8
    ACC = 16
    WF = 48
    HR = 112
    def wf(st, j, t): return WF + st * 32 + (j * 2 + t) * 4
    def hr(s, j): return HR + (s % 8) * 16 + j * 4
    e("s_cmp_ge_u32 s2, 256")
    e("s_cbranch_scc1 k2_done")
    stamp(e, P, 0); stamp(e, P, 6, True)
    e("s_load_dwordx4 s[4:7], s[0:1], 24")
    e("s_load_dwordx2 s[12:13], s[0:1], 48")
    e(f"v_lshrrev_b32 v{vT}, 6, v0")
    e(f"v_and_b32 v{vL}, 63, v0")
    e(f"v_readfirstlane_b32 s{sWAVE}, v{vT}")
    e(f"s_and_b32 s{sT}, s2, 7")
    e(f"s_lshr_b32 s3, s2, 3")
    e(f"s_lshr_b32 s{sMT}, s{sT}, 1")
    e(f"s_lshl_b32 s{sMT}, s{sMT}, 2")
    e(f"s_and_b32 s{sNT}, s3, 3")
    e(f"s_add_u32 s{sMT}, s{sMT}, s{sNT}")
    e(f"s_and_b32 s{sNT}, s{sT}, 1")
    e(f"s_lshl_b32 s{sNT}, s{sNT}, 3")
    e(f"s_lshr_b32 s3, s3, 2")
    e(f"s_add_u32 s{sNT}, s{sNT}, s3")
    a, b, c, t = vT, vT + 1, vT + 2, vT + 3
    e(f"v_lshrrev_b32 v{a}, 3, v{vL}")
    e(f"v_and_b32 v{b}, 7, v{vL}")
    e(f"v_bfe_u32 v{c}, v{vL}, 4, 1")
    e(f"v_lshlrev_b32 v{c}, 1, v{c}")
    e(f"v_xor_b32 v{b}, v{b}, v{c}")
    e(f"v_lshlrev_b32 v{b}, 4, v{b}")
    e(f"v_lshl_add_u32 v{vD0}, v{a}, 11, v{b}")
    e(f"v_add_u32 v{vD1}, {8*2048-1024}, v{vD0}")
    e(f"v_lshlrev_b32 v{vHo}, 4, v{vL}")
    e(f"s_lshl_b32 s{sWk}, s{sWAVE}, 15")
    e(f"s_lshl_b32 s{sT}, s{sNT}, 7")
    e(f"s_add_u32 s{sWk}, s{sWk}, s{sT}")
    e(f"s_lshl_b32 s{sT}, s{sMT}, 2")
    e(f"s_add_u32 s{sT}, s{sT}, s{sWAVE}")
    e(f"s_mul_i32 s{sHk}, s{sT}, {224*1024}")
    e(f"s_lshl_b32 s{sWd}, s{sWAVE}, 11")
    e("s_waitcnt lgkmcnt(0)")
    stamp(e, P, 1, mode=2)
    srd(e, SW2, 4, 3584 * 1024 * 2)
    srd(e, SO, 6, 2048 * 1024 * 2)
    srd(e, SH, 12, 2048 * 3584 * 2)
    LDW = P.get("ldflag2w", "")
    LDH = P.get("ldflag2h", "")
    def dma(s):
        m = f"s_add_u32 m0, s{sWd}, {(s%8)*8192}" if s % 8 else f"s_mov_b32 m0, s{sWd}"
        return m, [f"buffer_load_dwordx4 v{vD0}, s[{SW2}:{SW2+3}], s{sWk} offen {LDW} lds",
                   f"buffer_load_dwordx4 v{vD1}, s[{SW2}:{SW2+3}], s{sWk} offen offset:1024 {LDW} lds"], f"s_add_u32 s{sWk}, s{sWk}, {64*2048}"
    def hld(s):
        return [f"buffer_load_dwordx4 v[{hr(s,j)}:{hr(s,j)+3}], v{vHo}, s[{SH}:{SH+3}], s{sHk} offen offset:{1024*j} {LDH}" for j in range(4)], f"s_add_u32 s{sHk}, s{sHk}, 4096"
    m, L, p = dma(0); e(m); e("s_nop 0"); [e(x) for x in L]; e(p)
    for s in range(-7, 0):
        m, L, p = dma(s + 8); e(m); e("s_nop 0"); [e(x) for x in L]; e(p)
        L, p = hld(s + 7); [e(x) for x in L]; e(p)
    stamp(e, P, 2, mode=2)
    e(f"v_lshrrev_b32 v{a}, 5, v{vL}")
    e(f"v_bfe_u32 v{b}, v{vL}, 2, 2")
    e(f"v_lshl_add_u32 v{a}, v{a}, 2, v{b}")
    e(f"v_lshlrev_b32 v{vA0}, 7, v{a}")
    e(f"v_and_b32 v{c}, 1, v{vL}")
    e(f"v_lshl_add_u32 v{vA0}, v{c}, 6, v{vA0}")
    e(f"v_bfe_u32 v{c}, v{vL}, 3, 1")
    e(f"v_lshl_add_u32 v{vA0}, v{c}, 5, v{vA0}")
    e(f"v_bfe_u32 v{c}, v{vL}, 4, 1")
    e(f"v_lshl_add_u32 v{vA0}, v{c}, 4, v{vA0}")
    e(f"v_bfe_u32 v{c}, v{vL}, 1, 1")
    e(f"v_lshl_add_u32 v{vA0}, v{c}, 3, v{vA0}")
    e(f"v_xor_b32 v{vA1}, 32, v{vA0}")
    for r in range(ACC, ACC + 32): e(f"v_mov_b32 v{r}, 0")
    e(f"s_mov_b32 s{sCNT}, 6")
    def reads(s):
        st = s % 2
        R = []
        for j in range(4):
            for t in range(2):
                for i in range(2):
                    R.append(f"ds_read_b64_tr_b16 v[{wf(st,j,t)+2*i}:{wf(st,j,t)+2*i+1}], v{vA1 if t else vA0} offset:{(s%8)*8192+(16*j+8*i)*128}")
        return R
    def mf(s):
        st = s % 2
        return [f"v_mfma_f32_32x32x16_bf16 v[{ACC+16*t}:{ACC+16*t+15}], v[{wf(st,j,t)}:{wf(st,j,t)+3}], v[{hr(s,j)}:{hr(s,j)+3}], v[{ACC+16*t}:{ACC+16*t+15}]"
                for j in range(4) for t in range(2)]
    stamp(e, P, 3, mode=2)
    e("s_waitcnt vmcnt(42)")
    stamp(e, P, 4, mode=2)
    e("s_barrier")
    stamp(e, P, 5, mode=2)
    stamp(e, P, 1)
    for x in reads(0): e(x)
    def step(s, vm, dD, dH, rd):
        e(f"s_waitcnt vmcnt({vm}) lgkmcnt(0)")
        if rd: e("s_barrier")
        fill = {}
        def add(i, x): fill.setdefault(i, []).append(x)
        V = []
        if dD:
            m, L, p = dma(s + 8)
            add(-1, m)
            V += L + [p]
        if dH:
            L, p = hld(s + 7)
            V += L + [p]
        R = reads(s + 1) if rd else []
        for i, x in enumerate(R): add(i // 3, x)
        for i, x in enumerate(V): add(i, x)
        interleave(e, mf(s), fill)
    e.raw(".p2align 6")
    e.label("k2_loop")
    for s in range(8): step(s, 36, True, True, True)
    e(f"s_sub_u32 s{sCNT}, s{sCNT}, 1")
    e(f"s_cmp_lg_u32 s{sCNT}, 0")
    e("s_cbranch_scc1 k2_loop")
    stamp(e, P, 2)
    cnt = {s: 6 for s in range(40, 48)}; cnt[48] = 4
    for s in range(49, 56): cnt[s] = 0
    for s in range(48, 56):
        vm = sum(cnt[q] for q in range(s - 6, s))
        step(s, vm, False, s == 48, s < 55)
    stamp(e, P, 3)
    e(f"s_lshl_b32 s{sT}, s{sMT}, 2")
    e(f"s_add_u32 s{sT}, s{sT}, s{sWAVE}")
    e(f"s_lshl_b32 s{sT}, s{sT}, 16")
    e(f"s_lshl_b32 s3, s{sNT}, 7")
    e(f"s_add_u32 s{sT}, s{sT}, s3")
    e(f"v_and_b32 v{a}, 31, v{vL}")
    e(f"v_lshrrev_b32 v{b}, 5, v{vL}")
    e(f"v_lshlrev_b32 v{b}, 6, v{b}")
    e(f"v_lshl_add_u32 v{a}, v{a}, 11, v{b}")
    e("s_nop 7")
    for t in range(2):
        for j in range(8):
            e(f"v_cvt_pk_bf16_f32 v{WF+8*t+j}, v{ACC+16*t+2*j}, v{ACC+16*t+2*j+1}")
        for q in range(2):
            e(f"buffer_store_dwordx4 v[{WF+8*t+4*q}:{WF+8*t+4*q+3}], v{a}, s[{SO}:{SO+3}], s{sT} offen offset:{32*t+16*q}")
    stamp(e, P, 4)
    if P.get("stamp"): e("s_waitcnt vmcnt(0)")
    stamp(e, P, 5); stamp(e, P, 7, True)
    dump_stamps(e, P, 8, 1, sWAVE, 12)
    e.label("k2_done")
    e("s_endpgm")
    return kd(n, 240, 100, 240)

def gen(P):
    e = E()
    e.raw(HDR + "; @launch kernel=k1_kernel grid=(256,1,1) block=(256,1,1) lds=163840\n"
          "; @launch kernel=k2_kernel grid=(256,1,1) block=(256,1,1) lds=65536")
    e.raw('.amdgcn_target "amdgcn-amd-amdhsa--gfx950"\n.text')
    d1 = k1(e, P)
    d2 = k2(e, P)
    return e.text() + d1 + d2

if __name__ == "__main__":
    out = sys.argv[1]
    P = json.loads(sys.argv[2]) if len(sys.argv) > 2 else {}
    open(out, "w").write(gen(P))
```

```python
import sys, json
from gen import HDR, E, kd, srd, stamp, dump_stamps

class VQ:
    def __init__(self): self.tags = []
    def issue(self, tag): self.tags.append(tag)
    def need(self, tags):
        last = -1
        for i, t in enumerate(self.tags):
            if t in tags: last = i
        return min(63, len(self.tags) - 1 - last)

def emit_stream(e, vq, mfmas, fill):
    def out(x):
        if isinstance(x, tuple):
            e(x[0]); vq.issue(x[1])
        else: e(x)
    for x in fill.get(-1, []): out(x)
    for i, m in enumerate(mfmas):
        e(m)
        for x in fill.get(i, []): out(x)

def spread(n, lo, hi):
    if n == 0: return []
    if n == 1: return [lo]
    return [lo + (hi - lo) * j // (n - 1) for j in range(n)]

MF = "v_mfma_f32_16x16x32_bf16"

def k1(e, P):
    n = "k1_kernel"
    e.raw(f".globl {n}\n.p2align 8\n.type {n},@function")
    e.label(n)
    vq = VQ()
    SX, SW1, SW3, SH, SW2 = 16, 20, 24, 28, 52
    sWAVE, sMT, sFT = 32, 33, 34
    sXk, sXk2, sWk = 35, 36, 37
    sXd, sWd, sT = 38, 39, 43
    sC1, sC2 = 44, 46
    sO = 48
    sPX, sPW, sP2 = 56, 57, 58
    RB = P.get("rb1", 4)
    sXo, sWo = 80, 84
    if RB == 8: sXo, sWo = 80, 60
    def sxo(j): return 80 + j
    def swo(j): return (84 + j) if RB <= 4 else (60 + j if j < 4 else 88 + j - 4)
    vXb = [24, 25, 26, 27]
    vX = [1, 2, 3, 4]
    vW0, vW1 = 5, 6
    vXa = [[7, 8], [9, 10]]
    vWa = 11
    vPX, vPW, vP2, vDum = 12, 13, 14, 31
    vL = 15
    vT = 16
    ACC = 32
    def acc(ft, mat, mt): return ACC + ((ft * 2 + mat) * 4 + mt) * 4
    def fx(st, mt): return st * 72 + mt * 4
    def fw(st, ft, mat): return st * 72 + 16 + (ft * 2 + mat) * 4
    XBASE = 65536
    e("s_cmp_ge_u32 s2, 256")
    e("s_cbranch_scc1 k1_done")
    stamp(e, P, 0); stamp(e, P, 6, True)
    e("s_load_dwordx8 s[4:11], s[0:1], 0")
    e("s_load_dwordx2 s[12:13], s[0:1], 48")
    e(f"v_lshrrev_b32 v{vT}, 6, v0")
    e(f"v_and_b32 v{vL}, 63, v0")
    e(f"v_readfirstlane_b32 s{sWAVE}, v{vT}")
    e(f"s_and_b32 s{sT}, s2, 7")
    e(f"s_lshr_b32 s3, s2, 3")
    e(f"s_and_b32 s{sMT}, s{sT}, 1")
    e(f"s_lshl_b32 s{sMT}, s{sMT}, 2")
    e(f"s_and_b32 s{sFT}, s3, 3")
    e(f"s_add_u32 s{sMT}, s{sMT}, s{sFT}")
    e(f"s_lshr_b32 s{sFT}, s{sT}, 1")
    e(f"s_lshl_b32 s{sFT}, s{sFT}, 3")
    e(f"s_lshr_b32 s{sO}, s3, 2")
    e(f"s_add_u32 s{sFT}, s{sFT}, s{sO}")
    a, b, c, t = vT, vT + 1, vT + 2, vT + 3
    e(f"v_lshrrev_b32 v{a}, 3, v{vL}")
    e(f"v_and_b32 v{b}, 7, v{vL}")
    e(f"v_lshrrev_b32 v{c}, 4, v{vL}")
    e(f"v_xor_b32 v{t}, v{b}, v{c}")
    e(f"v_lshlrev_b32 v{t}, 4, v{t}")
    e(f"v_lshl_add_u32 v{vX[0]}, v{a}, 11, v{t}")
    e(f"v_xor_b32 v{t}, 64, v{t}")
    e(f"v_lshl_add_u32 v{vX[1]}, v{a}, 11, v{t}")
    e(f"v_add_u32 v{vX[1]}, {8*2048-1024}, v{vX[1]}")
    e(f"v_add_u32 v{vX[2]}, {16*2048-2048}, v{vX[0]}")
    e(f"v_add_u32 v{vX[3]}, {16*2048-2048}, v{vX[1]}")
    e(f"v_bfe_u32 v{c}, v0, 6, 1")
    e(f"v_lshlrev_b32 v{c}, 3, v{c}")
    e(f"v_sub_u32 v{c}, v{vL}, v{c}")
    e(f"v_and_b32 v{c}, 63, v{c}")
    e(f"v_mul_u32_u24 v{a}, 37, v{c}")
    e(f"v_lshrrev_b32 v{a}, 9, v{a}")
    e(f"v_mul_u32_u24 v{b}, 14, v{a}")
    e(f"v_sub_u32 v{b}, v{c}, v{b}")
    e(f"v_mul_u32_u24 v{a}, 7168, v{a}")
    e(f"v_cmp_gt_u32 vcc, 56, v{c}")
    e(f"v_lshl_add_u32 v{vW0}, v{b}, 4, v{a}")
    e(f"v_mov_b32 v{t}, 0x40000000")
    e(f"v_cndmask_b32 v{vW0}, v{t}, v{vW0}, vcc")
    e(f"v_add_u32 v{vW1}, {4*7168-1024}, v{vW0}")
    e(f"s_lshl_b32 s{sXk}, s{sMT}, 19")
    e(f"s_lshl_b32 s{sO}, s{sWAVE}, 17")
    e(f"s_add_u32 s{sXk}, s{sXk}, s{sO}")
    for p in range(4): e(f"v_add_u32 v{vXb[p]}, 0x10000, v{vX[p]}")
    e(f"s_mul_i32 s{sWk}, s{sWAVE}, {8*7168}")
    e(f"s_mul_i32 s{sO}, s{sFT}, 224")
    e(f"s_add_u32 s{sWk}, s{sWk}, s{sO}")
    TAB = P.get("tab1") or [[0,1,2,3,7,4,5,6,11,8,9,10,15,12,13,14],
           [1,4,0,2,3,8,5,6,7,12,9,10,11,13,14,15],
           [2,0,5,1,3,4,9,6,7,8,13,10,11,12,14,15],
           [3,0,1,6,2,4,5,10,7,8,9,14,11,12,13,15]]
    for tb in TAB: assert sorted(tb) == list(range(16))
    enc = [sum(u << (4 * i) for i, u in enumerate(tb)) for tb in TAB]
    sTab = 60
    e(f"s_and_b32 s{sO}, s3, 3")
    e(f"s_lshr_b32 s{sO+1}, s3, 2")
    e(f"s_add_u32 s{sO}, s{sO}, s{sO+1}")
    e(f"s_and_b32 s{sO}, s{sO}, 3")
    e(f"s_mov_b32 s{sTab}, {enc[0] & 0xffffffff}")
    e(f"s_mov_b32 s{sTab+1}, {enc[0] >> 32}")
    for c_ in range(1, 4):
        e(f"s_cmp_eq_u32 s{sO}, {c_}")
        e(f"s_cselect_b32 s{sTab}, {enc[c_] & 0xffffffff}, s{sTab}")
        e(f"s_cselect_b32 s{sTab+1}, {enc[c_] >> 32}, s{sTab+1}")
    e(f"s_lshl_b32 s{sXd}, s{sWAVE}, 13")
    e(f"s_add_u32 s{sXd}, s{sXd}, {XBASE}")
    e(f"s_lshl_b32 s{sWd}, s{sWAVE}, 12")
    e("s_waitcnt lgkmcnt(0)")
    stamp(e, P, 1, mode=2)
    srd(e, SX, 4, 2048 * 1024 * 2)
    srd(e, SW1, 6, 1024 * 3584 * 2)
    srd(e, SW3, 8, 1024 * 3584 * 2)
    LD = P.get("ld1", "")
    def gX(v, half):
        so = 80
        it = []
        for p in range(4):
            pre = []
            if p == 0:
                if half == 0:
                    pre += [f"s_bfe_u32 s{so}, s{sTab + v//8}, {(4*(v%8)) | (4<<16)}", f"s_lshl_b32 s{so}, s{so}, 7", f"s_add_u32 s{so}, s{so}, s{sXk}"]
                pre += [f"s_add_u32 m0, s{sXd}, {(v%3)*32768 + half*4096}"]
            it.append((pre, (f"buffer_load_dwordx4 v{(vXb if half else vX)[p]}, s[{SX}:{SX+3}], s{so} offen offset:{1024*p} {LD} lds", f"X{v}"), []))
        return it
    def gW(s):
        it = []
        sw = 81; v = s // 2
        for p in range(4):
            S = SW3 if p >= 2 else SW1
            pre = []
            if p == 0:
                if s % 2 == 0:
                    pre += [f"s_bfe_u32 s{sw}, s{sTab + v//8}, {(4*(v%8)) | (4<<16)}", f"s_mul_i32 s{sw}, s{sw}, {64*7168}", f"s_add_u32 s{sw}, s{sw}, s{sWk}"]
                else:
                    pre += [f"s_add_u32 s{sw}, s{sw}, {32*7168}"]
            if p % 2 == 0: pre += [f"s_add_u32 m0, s{sWd}, {(s%4)*16384 + (p//2)*2048}"]
            it.append((pre, (f"buffer_load_dwordx4 v{vW1 if p%2 else vW0}, s[{S}:{S+3}], s{sw} offen offset:{1024*(p%2)} {LD} lds", f"W{s}"), []))
        return it
    Q = []
    def q(items, earliest): Q.extend((it, earliest) for it in items)
    q(gX(0, 0), -9); q(gW(0), -9); q(gX(0, 1), -9)
    for s in range(-3, 28):
        q(gW(s + 4), s if s >= 0 else -9)
        v, half = ((s + 5) // 2, 0) if s % 2 else ((s + 4) // 2, 1)
        if v <= 15: q(gX(v, half), (2 * (v - 3) + 1) if v >= 3 else -9)
    def emit_direct(k):
        for _ in range(k):
            (pre, ld, post), _e = Q.pop(0)
            for x in pre: e(x)
            if pre: e("s_nop 0")
            e(ld[0]); vq.issue(ld[1])
            for x in post: e(x)
    emit_direct(12)
    stamp(e, P, 2, mode=2)
    srd(e, SH, 12, 2048 * 3584 * 2)
    srd(e, SW2, 10, 1024 * 3584 * 2)
    if P.get("k2b", 2):
        srd(e, 84, 12, 64 << 20)
        e(f"s_lshl_b32 s82, s2, 2")
        e(f"s_add_u32 s82, s82, s{sWAVE}")
        e(f"s_lshl_b32 s82, s82, 7")
        e(f"s_add_u32 s82, s82, {48 << 20}")
        e(f"v_mov_b32 v{vDum}, 0")
        e("s_mov_b64 exec, 1")
        e(f"buffer_store_dword v{vDum}, v{vDum}, s[84:87], s82 offen"); vq.issue("FZ")
        e("s_mov_b64 exec, -1")
    e(f"v_and_b32 v{a}, 15, v{vL}")
    e(f"v_lshrrev_b32 v{b}, 4, v{vL}")
    e(f"v_bfe_u32 v{c}, v{vL}, 1, 3")
    e(f"v_xor_b32 v{c}, v{c}, v{b}")
    e(f"v_lshlrev_b32 v{c}, 4, v{c}")
    e(f"v_lshl_add_u32 v{c}, v{a}, 7, v{c}")
    e(f"v_add_u32 v{vXa[0][0]}, s{sXd}, v{c}")
    e(f"v_xor_b32 v{vXa[1][0]}, 64, v{vXa[0][0]}")
    e(f"v_add_u32 v{vXa[0][1]}, 0x10000, v{vXa[0][0]}")
    e(f"v_add_u32 v{vXa[1][1]}, 0x10000, v{vXa[1][0]}")
    e(f"v_lshlrev_b32 v{vWa}, 12, v{b}")
    e(f"v_bfe_u32 v{c}, v{vL}, 4, 1")
    e(f"v_lshl_add_u32 v{vWa}, v{c}, 7, v{vWa}")
    e(f"v_bfe_u32 v{c}, v{vL}, 2, 2")
    e(f"v_mul_u32_u24 v{c}, 224, v{c}")
    e(f"v_add_u32 v{vWa}, v{vWa}, v{c}")
    e(f"v_and_b32 v{c}, 3, v{vL}")
    e(f"v_lshl_add_u32 v{vWa}, v{c}, 3, v{vWa}")
    e(f"v_and_b32 v{a}, 7, v{vL}")
    e(f"v_lshrrev_b32 v{b}, 3, v{vL}")
    e(f"v_lshlrev_b32 v{b}, 7, v{b}")
    e(f"v_lshl_add_u32 v{vPX}, v{a}, 11, v{b}")
    e(f"s_and_b32 s{sPX}, s2, 1")
    e(f"s_lshl_b32 s{sPX}, s{sPX}, 5")
    e(f"s_add_u32 s{sPX}, s{sPX}, s3")
    e(f"s_lshl_b32 s{sPX}, s{sPX}, 2")
    e(f"s_add_u32 s{sPX}, s{sPX}, s{sWAVE}")
    e(f"s_lshl_b32 s{sPX}, s{sPX}, 14")
    e(f"v_mul_u32_u24 v{a}, 37, v{vL}")
    e(f"v_lshrrev_b32 v{a}, 9, v{a}")
    e(f"v_mul_u32_u24 v{b}, 14, v{a}")
    e(f"v_sub_u32 v{b}, v{vL}, v{b}")
    e(f"s_mov_b32 s{sPW}, {128*7168}")
    e(f"v_mul_lo_u32 v{a}, v{a}, s{sPW}")
    e(f"v_cmp_gt_u32 vcc, 56, v{vL}")
    e(f"v_lshl_add_u32 v{vPW}, v{b}, 7, v{a}")
    e(f"v_mov_b32 v{t}, 0x40000000")
    e(f"v_cndmask_b32 v{vPW}, v{t}, v{vPW}, vcc")
    e(f"s_lshl_b32 s{sPW}, s3, 2")
    e(f"s_add_u32 s{sPW}, s{sPW}, s{sWAVE}")
    e(f"s_mul_i32 s{sPW}, s{sPW}, 7168")
    e(f"s_bfe_u32 s{sO}, s2, 0x20001")
    e(f"s_mul_i32 s{sO}, s{sO}, 1792")
    e(f"s_add_u32 s{sPW}, s{sPW}, s{sO}")
    e(f"v_lshlrev_b32 v{vP2}, 7, v{vL}")
    e(f"v_cndmask_b32 v{vP2}, v{t}, v{vP2}, vcc")
    e(f"s_lshl_b32 s{sP2}, s2, 2")
    e(f"s_add_u32 s{sP2}, s{sP2}, s{sWAVE}")
    e(f"s_mul_i32 s{sP2}, s{sP2}, 7168")
    PFL = P.get("pfl", "")
    def pf(kind, half):
        if kind == "x": return (f"buffer_load_dword v{vDum}, v{vPX}, s[{SX}:{SX+3}], s{sPX} offen offset:{1024*half} {PFL}", "PF")
        if kind == "2": return (f"buffer_load_dword v{vDum}, v{vP2}, s[{SW2}:{SW2+3}], s{sP2} offen {PFL}", "PF")
        S = SW1 if kind == "g" else SW3
        return (f"buffer_load_dword v{vDum}, v{vPW}, s[{S}:{S+3}], s{sPW} offen {PFL}", "PF")
    PFS = {}
    if P.get("pf1", 0):
        p0 = P.get("pf1a", -1); p1 = P.get("pf1b", 6)
        PFS.setdefault(p0, []).extend([pf("x", 0), pf("g", 0), pf("u", 0), f"s_add_u32 s{sPW}, s{sPW}, {512*7168}"])
        PFS.setdefault(p1, []).extend([pf("x", 1), pf("g", 1), pf("u", 1)])
    if P.get("pf2", 1):
        PFS.setdefault(P.get("pf2s", 28), []).append(pf("2", 0))
    for r in range(ACC, 256):
        e(f"v_mov_b32 v{r}, 0")
    e(f"s_mov_b32 s{sC1}, 0xbfb8aa3b")
    e(f"s_mov_b32 s{sC1+1}, 0xbfb8aa3b")
    e(f"s_mov_b32 s{sC2}, 1.0")
    e(f"s_mov_b32 s{sC2+1}, 1.0")
    emit_direct(P.get("pro2", 16))
    for x in PFS.get(-1, []):
        if isinstance(x, tuple): e(x[0]); vq.issue(x[1])
        else: e(x)
    def reads(s):
        st = s % 2; u = s // 2
        xa = vXa[s % 2][1 if u % 3 == 2 else 0]
        xo = 32768 if u % 3 == 1 else 0
        R = [f"ds_read_b128 a[{fx(st,mt)}:{fx(st,mt)+3}], v{xa} offset:{xo+mt*2048}" for mt in range(4)]
        for ft in range(7):
            for mat in range(2):
                for i in range(2):
                    r = fw(st, ft, mat) + 2 * i
                    R.append(f"ds_read_b64_tr_b16 a[{r}:{r+1}], v{vWa} offset:{(s%4)*16384+mat*2048+i*1024+ft*32}")
        return R
    def mf(s):
        st = s % 2
        return [f"{MF} v[{acc(ft,mat,mt)}:{acc(ft,mat,mt)+3}], a[{fw(st,ft,mat)}:{fw(st,ft,mat)+3}], a[{fx(st,mt)}:{fx(st,mt)+3}], v[{acc(ft,mat,mt)}:{acc(ft,mat,mt)+3}]"
                for ft in range(7) for mat in range(2) for mt in range(4)]
    stamp(e, P, 3, mode=2)
    e(f"s_waitcnt vmcnt({vq.need({'X0','W0'})})")
    stamp(e, P, 4, mode=2)
    e("s_barrier")
    stamp(e, P, 5, mode=2)
    stamp(e, P, 1)
    for x in reads(0): e(x)
    quota = P.get("quota", 12)
    r_lo, r_hi = P.get("rpos", [0, 44])
    d_lo, d_hi = P.get("dpos", [1, 50])
    e.raw(".p2align 3")
    for s in range(32):
        if s == 28: stamp(e, P, 2)
        if s < 31:
            tags = {f"W{s+1}", f"X{(s+1)//2}"}
            e(f"s_waitcnt vmcnt({vq.need(tags)}) lgkmcnt(0)")
            e("s_barrier")
        else:
            e("s_waitcnt lgkmcnt(0)")
        fill = {}
        def add(i, x): fill.setdefault(i, []).append(x)
        R = reads(s + 1) if s < 31 else []
        if P.get("nolds"): R = []
        for pos, x in zip(spread(len(R), r_lo, r_hi), R): add(pos, x)
        items = []
        while Q and len(items) < quota and Q[0][1] <= s:
            items.append(Q.pop(0)[0])
        if P.get("nodma"): items = []
        for x in PFS.get(s, []): add(0, x)
        for pos, (pre, ld, post) in zip(spread(len(items), d_lo, d_hi), items):
            for j, x in enumerate(pre): add(max(-1, pos - 1 - (len(pre) - 1 - j) // 2), x)
            add(pos, ld)
            for x in post: add(pos + 1, x)
        emit_stream(e, vq, mf(s), fill)
    assert not Q or P.get("nodma")
    stamp(e, P, 3)
    e(f"s_lshl_b32 s{sT}, s{sMT}, 3")
    e(f"s_lshl_b32 s3, s{sWAVE}, 1")
    e(f"s_add_u32 s{sT}, s{sT}, s3")
    e(f"s_mul_i32 s{sO}, s{sT}, {224*1024}")
    e(f"s_mul_i32 s3, s{sFT}, 7")
    e(f"s_lshr_b32 s3, s3, 1")
    e(f"s_lshl_b32 s3, s3, 11")
    e(f"s_add_u32 s{sO}, s{sO}, s3")
    e(f"s_add_u32 s{sO+1}, s{sO}, 4096")
    e(f"s_add_u32 s{sO+2}, s{sO}, {224*1024}")
    e(f"s_add_u32 s{sO+3}, s{sO}, {224*1024+4096}")
    e(f"v_lshlrev_b32 v{vL}, 4, v{vL}")
    ST = P.get("st1", "sc0 sc1")
    e(f"s_bitcmp1_b32 s{sFT}, 0")
    e("s_cbranch_scc1 k1_epi_odd")
    def epi(par):
        groups = [(0, 1), (2, 3), (4, 5), (6,)] if par == 0 else [(0,), (1, 2), (3, 4), (5, 6)]
        k = 0
        for gi, g in enumerate(groups):
            for mp in ([0, 1, 2, 3] if len(g) == 2 else [0, 2]):
                tl = [(g[0], mp), (g[1], mp)] if len(g) == 2 else [(g[0], mp), (g[0], mp + 1)]
                T = vT + 8 * (k & 1); k += 1
                G = [acc(ft, 0, mt) + 2 * j for ft, mt in tl for j in range(2)]
                U = [acc(ft, 1, mt) + 2 * j for ft, mt in tl for j in range(2)]
                for j in range(4): e(f"v_pk_mul_f32 v[{T+2*j}:{T+2*j+1}], v[{G[j]}:{G[j]+1}], s[{sC1}:{sC1+1}]")
                for j in range(8): e(f"v_exp_f32 v{T+j}, v{T+j}")
                for j in range(4): e(f"v_pk_add_f32 v[{T+2*j}:{T+2*j+1}], v[{T+2*j}:{T+2*j+1}], s[{sC2}:{sC2+1}]")
                for j in range(8): e(f"v_rcp_f32 v{T+j}, v{T+j}")
                for j in range(4): e(f"v_pk_mul_f32 v[{T+2*j}:{T+2*j+1}], v[{T+2*j}:{T+2*j+1}], v[{G[j]}:{G[j]+1}]")
                for j in range(4): e(f"v_pk_mul_f32 v[{T+2*j}:{T+2*j+1}], v[{T+2*j}:{T+2*j+1}], v[{U[j]}:{U[j]+1}]")
                A = G[0]
                for j in range(4): e(f"v_cvt_pk_bf16_f32 v{A+j}, v{T+2*j}, v{T+2*j+1}")
                def addr(mt, extra):
                    off = gi * 2048 + (mt & 1) * 1024 + extra
                    return sO + 2 * (mt >> 1) + (off >> 12), off & 4095
                if len(g) == 2:
                    so, off = addr(mp, 0)
                    e(f"buffer_store_dwordx4 v[{A}:{A+3}], v{vL}, s[{SH}:{SH+3}], s{so} offen offset:{off} {ST}")
                else:
                    for z in range(2):
                        so, off = addr(mp + z, 8 * par)
                        e(f"buffer_store_dwordx2 v[{A+2*z}:{A+2*z+1}], v{vL}, s[{SH}:{SH+3}], s{so} offen offset:{off} {ST}")
    epi(0)
    e("s_branch k1_fin")
    e.label("k1_epi_odd")
    epi(1)
    e.label("k1_fin")
    stamp(e, P, 4)
    if P.get("stamp"): e("s_waitcnt vmcnt(0)")
    stamp(e, P, 5); stamp(e, P, 7, True)
    dump_stamps(e, P, 8, 0, sWAVE, 12)
    e.label("k1_done")
    e("s_endpgm")
    return kd(n, 256 + 144, 100, 256)

def k2(e, P):
    n = "k2_kernel"
    e.raw(f".globl {n}\n.p2align 8\n.type {n},@function")
    e.label(n)
    vq = VQ()
    SW2, SH, SO = 16, 20, 24
    sWAVE, sMT, sNT, sWk, sHk, sWd, sT, sPH, sPW = 32, 33, 34, 35, 36, 37, 39, 40, 41
    vD0, vD1, vHo, vL = 1, 2, 3, 4
    vA = [5, 6, 7, 8]
    vPH, vPW, vDum = 9, 10, 11
    vT = 12
    ACC = 16
    WF = 48
    HR = 112
    NS = P.get("ns2", 8)
    NH = P.get("nh2", 8)
    def acc(t, mh): return ACC + (t * 2 + mh) * 4
    def wf(st, sub, t): return WF + st * 32 + (sub * 4 + t) * 4
    def hr(s, sub, mh): return HR + (s % NH) * 16 + (sub * 2 + mh) * 4
    e("s_cmp_ge_u32 s2, 256")
    e("s_cbranch_scc1 k2_done")
    if P.get("k2half"):
        e(f"s_bitcmp1_b32 s2, {P['k2half']}")
        e("s_cbranch_scc1 k2_done")
    stamp(e, P, 0); stamp(e, P, 6, True)
    e("s_load_dwordx4 s[4:7], s[0:1], 24")
    e("s_load_dwordx2 s[12:13], s[0:1], 48")
    e(f"v_lshrrev_b32 v{vT}, 6, v0")
    e(f"v_and_b32 v{vL}, 63, v0")
    e(f"v_readfirstlane_b32 s{sWAVE}, v{vT}")
    e(f"s_and_b32 s{sT}, s2, 7")
    e(f"s_lshr_b32 s3, s2, 3")
    e(f"s_lshr_b32 s{sMT}, s{sT}, 1")
    e(f"s_lshl_b32 s{sMT}, s{sMT}, 2")
    e(f"s_and_b32 s{sNT}, s3, 3")
    e(f"s_add_u32 s{sMT}, s{sMT}, s{sNT}")
    e(f"s_and_b32 s{sNT}, s{sT}, 1")
    e(f"s_lshl_b32 s{sNT}, s{sNT}, 3")
    e(f"s_lshr_b32 s{sWk}, s3, 2")
    e(f"s_add_u32 s{sNT}, s{sNT}, s{sWk}")
    a, b, c, t = vT, vT + 1, vT + 2, vT + 3
    e(f"v_lshrrev_b32 v{a}, 3, v{vL}")
    e(f"v_and_b32 v{b}, 7, v{vL}")
    e(f"v_lshrrev_b32 v{c}, 4, v{vL}")
    e(f"v_lshlrev_b32 v{c}, 1, v{c}")
    e(f"v_xor_b32 v{b}, v{b}, v{c}")
    e(f"v_lshlrev_b32 v{b}, 4, v{b}")
    e(f"v_lshl_add_u32 v{vD0}, v{a}, 11, v{b}")
    e(f"v_add_u32 v{vD1}, {8*2048-1024}, v{vD0}")
    e(f"v_lshlrev_b32 v{vHo}, 4, v{vL}")
    e(f"s_lshl_b32 s{sWk}, s{sWAVE}, 15")
    e(f"s_lshl_b32 s{sT}, s{sNT}, 7")
    e(f"s_add_u32 s{sWk}, s{sWk}, s{sT}")
    e(f"s_lshl_b32 s{sT}, s{sMT}, 2")
    e(f"s_add_u32 s{sT}, s{sT}, s{sWAVE}")
    e(f"s_mul_i32 s{sHk}, s{sT}, {224*1024}")
    e(f"s_lshl_b32 s{sWd}, s{sWAVE}, 11")
    RB = P.get("rb2", 4)
    def sho(j): return 44 + j
    def swo(j): return 52 + j
    e(f"s_and_b32 s8, s3, 3")
    e(f"s_lshr_b32 s9, s3, 2")
    if RB == 8: e(f"s_lshl_b32 s8, s8, 1")
    e(f"s_add_u32 s8, s8, s9")
    for j in range(RB):
        e(f"s_add_u32 s9, s8, {j}")
        e(f"s_and_b32 s9, s9, {RB-1}")
        e(f"s_lshl_b32 s10, s9, 12")
        e(f"s_add_u32 s{sho(j)}, s10, s{sHk}")
        e(f"s_lshl_b32 s10, s9, 17")
        e(f"s_add_u32 s{swo(j)}, s10, s{sWk}")
    e(f"v_lshrrev_b32 v{a}, 2, v{vL}")
    e(f"v_and_b32 v{b}, 3, v{vL}")
    e(f"v_lshlrev_b32 v{b}, 7, v{b}")
    e(f"v_lshl_add_u32 v{vPH}, v{a}, 12, v{b}")
    e(f"v_lshl_add_u32 v{vPW}, v{a}, 17, v{b}")
    e(f"s_lshl_b32 s{sT}, s3, 2")
    e(f"s_add_u32 s{sT}, s{sT}, s{sWAVE}")
    e(f"s_bfe_u32 s{sPH}, s2, 0x20001")
    e(f"s_lshl_b32 s{sPH}, s{sPH}, 4")
    e(f"s_lshr_b32 s8, s{sT}, 3")
    e(f"s_add_u32 s{sPH}, s{sPH}, s8")
    e(f"s_mul_i32 s{sPH}, s{sPH}, {224*1024}")
    e(f"s_and_b32 s8, s{sT}, 7")
    e(f"s_lshl_b32 s8, s8, 9")
    e(f"s_add_u32 s{sPH}, s{sPH}, s8")
    e(f"s_lshl_b32 s{sPW}, s{sT}, 10")
    e(f"s_and_b32 s8, s{sT}, 1")
    e(f"s_lshl_b32 s8, s8, 9")
    e(f"s_sub_u32 s{sPW}, s{sPW}, s8")
    e(f"s_and_b32 s8, s2, 1")
    e(f"s_lshl_b32 s8, s8, 10")
    e(f"s_add_u32 s{sPW}, s{sPW}, s8")
    e("s_waitcnt lgkmcnt(0)")
    stamp(e, P, 1, mode=2)
    srd(e, SW2, 4, 3584 * 1024 * 2)
    srd(e, SH, 12, 2048 * 3584 * 2)
    LDW = P.get("ld2w", ""); LDH = P.get("ld2h", ""); PFL = P.get("pfl", "")
    def gD(s):
        sWk = swo(s % RB)
        return [([f"s_add_u32 m0, s{sWd}, {(s%NS)*8192}"], (f"buffer_load_dwordx4 v{vD0}, s[{SW2}:{SW2+3}], s{sWk} offen {LDW} lds", f"D{s}"), []),
                ([], (f"buffer_load_dwordx4 v{vD1}, s[{SW2}:{SW2+3}], s{sWk} offen offset:1024 {LDW} lds", f"D{s}"), [f"s_add_u32 s{sWk}, s{sWk}, {64*2048*RB*P.get('k2adv',1)}"])]
    def gH(s):
        sHk = sho(s % RB)
        return [([], (f"buffer_load_dwordx4 v[{hr(s,j//2,j%2)}:{hr(s,j//2,j%2)+3}], v{vHo}, s[{SH}:{SH+3}], s{sHk} offen offset:{1024*j} {LDH}", f"H{s}"),
                 [f"s_add_u32 s{sHk}, s{sHk}, {4096*RB*P.get('k2adv',1)}"] if j == 3 else []) for j in range(4)]
    def gP():
        return [([], (f"buffer_load_dword v{vDum}, v{vPH}, s[{SH}:{SH+3}], s{sPH} offen {PFL}", "PF"), [f"s_add_u32 s{sPH}, s{sPH}, 65536"]),
                ([], (f"buffer_load_dword v{vDum}, v{vPW}, s[{SW2}:{SW2+3}], s{sPW} offen {PFL}", "PF"), [f"s_add_u32 s{sPW}, s{sPW}, {16*64*2048}"])]
    Q = []
    def q(items, earliest): Q.extend((it, earliest) for it in items)
    pfs = P.get("pf2k", [-9, -9, 8, 24])
    pfi = 0
    q(gD(0), -9)
    for s in range(56):
        while pfi < len(pfs) and P.get("pf2on", 0) and pfs[pfi] <= max(-9, s + 1 - NS) and s >= P.get("pf2after", 1):
            q(gP(), pfs[pfi]); pfi += 1
        if s + 1 < 56: q(gD(s + 1), s + 1 - NS if s + 1 >= NS else -9)
        q(gH(s), s - NH + 1 if s >= NH else -9)
    def emit_direct(k):
        for _ in range(k):
            (pre, ld, post), _e = Q.pop(0)
            assert _e < 0
            for x in pre: e(x); e("s_nop 0")
            e(ld[0]); vq.issue(ld[1])
            for x in post: e(x)
    emit_direct(P.get("pro2a", 14))
    stamp(e, P, 2, mode=2)
    srd(e, SO, 6, 2048 * 1024 * 2)
    e(f"v_lshrrev_b32 v{a}, 2, v{vL}")
    e(f"v_lshlrev_b32 v{vA[0]}, 7, v{a}")
    e(f"v_bfe_u32 v{c}, v{vL}, 3, 2")
    e(f"v_lshl_add_u32 v{vA[0]}, v{c}, 5, v{vA[0]}")
    e(f"v_and_b32 v{c}, 3, v{vL}")
    e(f"v_lshl_add_u32 v{vA[0]}, v{c}, 3, v{vA[0]}")
    for tt in range(1, 4): e(f"v_xor_b32 v{vA[tt]}, {32*tt}, v{vA[0]}")
    for r in range(ACC, ACC + 32): e(f"v_mov_b32 v{r}, 0")
    def reads(s):
        st = s % 2
        return [f"ds_read_b64_tr_b16 v[{wf(st,sub,tt)+2*i}:{wf(st,sub,tt)+2*i+1}], v{vA[tt]} offset:{(s%NS)*8192+(32*sub+16*i)*128}"
                for sub in range(2) for tt in range(4) for i in range(2)]
    def mf(s):
        st = s % 2
        return [f"{MF} v[{acc(tt,mh)}:{acc(tt,mh)+3}], v[{wf(st,sub,tt)}:{wf(st,sub,tt)+3}], v[{hr(s,sub,mh)}:{hr(s,sub,mh)+3}], v[{acc(tt,mh)}:{acc(tt,mh)+3}]"
                for sub in range(2) for tt in range(4) for mh in range(2)]
    stamp(e, P, 3, mode=2)
    e(f"s_waitcnt vmcnt({vq.need({'D0'})})")
    stamp(e, P, 4, mode=2)
    e("s_barrier")
    stamp(e, P, 5, mode=2)
    stamp(e, P, 1)
    for x in reads(0): e(x)
    quota = P.get("quota2", 8)
    e.raw(".p2align 3")
    for s in range(56):
        if s == 48: stamp(e, P, 2)
        e(f"s_waitcnt vmcnt({vq.need({f'D{s+1}', f'H{s}'})}) lgkmcnt(0)")
        if s < 55 and not P.get("k2nobar"): e("s_barrier")
        fill = {}
        def add(i, x): fill.setdefault(i, []).append(x)
        R = reads(s + 1) if s < 55 else []
        if P.get("k2nolds"): R = []
        for pos, x in zip(spread(len(R), 0, 11), R): add(pos, x)
        items = []
        while Q and len(items) < quota and Q[0][1] <= s:
            items.append(Q.pop(0)[0])
        for pos, (pre, ld, post) in zip(spread(len(items), 0, 14), items):
            for x in pre: add(pos - 1, x)
            if P.get("k2noh") and ld[1][0] == "H": continue
            if P.get("k2nod") and ld[1][0] == "D": continue
            add(pos, ld)
            for x in post: add(pos, x)
        emit_stream(e, vq, mf(s) if not P.get("k2nomf") else ["s_nop 0"] * 16, fill)
    assert not Q
    stamp(e, P, 3)
    e(f"s_lshl_b32 s{sT}, s{sMT}, 2")
    e(f"s_add_u32 s{sT}, s{sT}, s{sWAVE}")
    e(f"s_lshl_b32 s{sT}, s{sT}, 16")
    e(f"s_lshl_b32 s3, s{sNT}, 7")
    e(f"s_add_u32 s{sT}, s{sT}, s3")
    e(f"s_add_u32 s3, s{sT}, {16*2048}")
    e(f"v_and_b32 v{a}, 15, v{vL}")
    e(f"v_bfe_u32 v{b}, v{vL}, 4, 1")
    e(f"v_lshlrev_b32 v{b}, 5, v{b}")
    e(f"v_lshl_add_u32 v{a}, v{a}, 11, v{b}")
    e(f"v_lshrrev_b32 v{b}, 5, v{vL}")
    e(f"v_lshl_add_u32 v{a}, v{b}, 4, v{a}")
    e("s_nop 3")
    for mh in range(2):
        for tt in range(4):
            A = acc(tt, mh); D = WF + (mh * 4 + tt) * 2
            e(f"v_cvt_pk_bf16_f32 v{D}, v{A}, v{A+1}")
            e(f"v_cvt_pk_bf16_f32 v{D+1}, v{A+2}, v{A+3}")
    e("s_nop 1")
    for mh in range(2):
        for pr in range(2):
            D = WF + (mh * 4 + pr * 2) * 2
            e(f"v_permlane16_swap_b32 v{D}, v{D+2}")
            e(f"v_permlane16_swap_b32 v{D+1}, v{D+3}")
            e(f"buffer_store_dwordx4 v[{D}:{D+3}], v{a}, s[{SO}:{SO+3}], s{3 if mh else sT} offen offset:{64*pr}")
    stamp(e, P, 4)
    if P.get("stamp"): e("s_waitcnt vmcnt(0)")
    stamp(e, P, 5); stamp(e, P, 7, True)
    dump_stamps(e, P, 8, 1, sWAVE, 12)
    e.label("k2_done")
    e("s_endpgm")
    nv = HR + NH * 16
    return kd(n, nv, 100, (nv + 3) // 4 * 4), NS * 8192

def gen(P):
    e = E()
    e.raw('.amdgcn_target "amdgcn-amd-amdhsa--gfx950"\n.text')
    d1 = k1(e, P)
    if P.get("k2b", 2) == 2:
        from k2c import k2c
        d2, lds2 = k2c(e, P)
    elif P.get("k2b", 2) == 1:
        from k2b import k2b
        d2, lds2 = k2b(e, P)
    else:
        d2, lds2 = k2(e, P)
    return (HDR + "; @launch kernel=k1_kernel grid=(256,1,1) block=(256,1,1) lds=163840\n"
            f"; @launch kernel=k2_kernel grid=(256,1,1) block=(256,1,1) lds={lds2}\n" + e.text() + d1 + d2)

if __name__ == "__main__":
    out = sys.argv[1]
    P = json.loads(sys.argv[2]) if len(sys.argv) > 2 else {}
    open(out, "w").write(gen(P))
```

```python
from gen import kd, srd, stamp, dump_stamps
from gen2 import VQ, emit_stream, spread, MF

PART_OFF = 32 << 20
FLAG_OFF = 48 << 20

def k2b(e, P):
    n = "k2_kernel"
    e.raw(f".globl {n}\n.p2align 8\n.type {n},@function")
    e.label(n)
    SW2, SH, SO, SP = 16, 20, 24, 28
    sWAVE, sMT, sNT, sWk, sHk, sWd, sT, sPart, sFlag, sTH, sTW = 32, 33, 34, 35, 36, 37, 39, 40, 41, 42, 43
    def sho(j, rb): return (44 + j) if rb == 4 else (52 + j) if rb == 2 else sHk
    def swo(j, rb): return (48 + j) if rb == 4 else (54 + j) if rb == 2 else sWk
    vD = [1, 2, 3, 4]
    vHo, vL, vZ = 5, 6, 7
    vA = list(range(8, 16))
    vT = 16
    ACC = 20
    WF = 84
    HR = 148
    NS = 4; NH = 6
    N0 = P.get("n0", 26); N1 = 56 - N0
    def acc(t, mh): return ACC + (t * 2 + mh) * 4
    def wf(st, t): return WF + st * 32 + t * 4
    def hr(s, sub, mh): return HR + (s % NH) * 16 + (sub * 2 + mh) * 4
    e("s_cmp_ge_u32 s2, 256")
    e("s_cbranch_scc1 k2_done")
    stamp(e, P, 0); stamp(e, P, 6, True)
    e("s_load_dwordx4 s[4:7], s[0:1], 24")
    e("s_load_dwordx2 s[12:13], s[0:1], 48")
    e(f"v_lshrrev_b32 v{vT}, 6, v0")
    e(f"v_and_b32 v{vL}, 63, v0")
    e(f"v_readfirstlane_b32 s{sWAVE}, v{vT}")
    e(f"s_bfe_u32 s8, s2, {4 | (2<<16)}")
    e(f"s_lshr_b32 s9, s2, 6")
    e(f"s_bfe_u32 s{sMT}, s2, {1 | (2<<16)}")
    e(f"s_lshl_b32 s{sMT}, s{sMT}, 2")
    e(f"s_add_u32 s{sMT}, s{sMT}, s8")
    e(f"s_and_b32 s{sNT}, s2, 1")
    e(f"s_lshl_b32 s{sNT}, s{sNT}, 2")
    e(f"s_add_u32 s{sNT}, s{sNT}, s9")
    e(f"s_add_u32 s8, s8, s9")
    a, b, c, t = vT, vT + 1, vT + 2, vT + 3
    e(f"v_lshrrev_b32 v{a}, 4, v{vL}")
    e(f"v_and_b32 v{b}, 15, v{vL}")
    e(f"v_lshlrev_b32 v{c}, 1, v{a}")
    e(f"v_xor_b32 v{b}, v{b}, v{c}")
    e(f"v_lshlrev_b32 v{b}, 4, v{b}")
    e(f"v_lshl_add_u32 v{vD[0]}, v{a}, 11, v{b}")
    e(f"v_xor_b32 v{vD[1]}, 128, v{vD[0]}")
    e(f"v_add_u32 v{vD[1]}, {4*2048-1024}, v{vD[1]}")
    e(f"v_add_u32 v{vD[2]}, {8*2048-2048}, v{vD[0]}")
    e(f"v_add_u32 v{vD[3]}, {8*2048-2048}, v{vD[1]}")
    e(f"v_lshlrev_b32 v{vHo}, 4, v{vL}")
    e(f"v_mov_b32 v{vZ}, 0")
    e(f"s_lshl_b32 s{sWk}, s{sWAVE}, 15")
    e(f"s_lshl_b32 s{sT}, s{sNT}, 8")
    e(f"s_add_u32 s{sWk}, s{sWk}, s{sT}")
    e(f"s_lshl_b32 s{sT}, s{sMT}, 2")
    e(f"s_add_u32 s{sT}, s{sT}, s{sWAVE}")
    e(f"s_mul_i32 s{sHk}, s{sT}, {224*1024}")
    e(f"s_lshl_b32 s{sWd}, s{sWAVE}, 12")
    for rb in (4, 2):
        for j in range(rb):
            e(f"s_add_u32 s9, s8, {j}")
            e(f"s_and_b32 s9, s9, {rb-1}")
            e(f"s_lshl_b32 s10, s9, 12")
            e(f"s_add_u32 s{sho(j,rb)}, s10, s{sHk}")
            e(f"s_lshl_b32 s10, s9, 17")
            e(f"s_add_u32 s{swo(j,rb)}, s10, s{sWk}")
    e(f"s_lshl_b32 s{sT}, s{sMT}, 3")
    e(f"s_add_u32 s{sT}, s{sT}, s{sNT}")
    e(f"s_lshl_b32 s{sFlag}, s{sT}, 7")
    e(f"s_add_u32 s{sFlag}, s{sFlag}, {FLAG_OFF}")
    e(f"s_lshl_b32 s{sT}, s{sT}, 2")
    e(f"s_add_u32 s{sT}, s{sT}, s{sWAVE}")
    e(f"s_lshl_b32 s{sPart}, s{sT}, 14")
    e(f"s_add_u32 s{sPart}, s{sPart}, {PART_OFF}")
    e(f"v_lshrrev_b32 v{a}, 2, v{vL}")
    e(f"v_lshlrev_b32 v{vA[0]}, 8, v{a}")
    e(f"v_and_b32 v{c}, 7, v{a}")
    e(f"v_lshl_add_u32 v{vA[0]}, v{c}, 5, v{vA[0]}")
    e(f"v_and_b32 v{c}, 3, v{vL}")
    e(f"v_lshl_add_u32 v{vA[0]}, v{c}, 3, v{vA[0]}")
    for tt in range(1, 8): e(f"v_xor_b32 v{vA[tt]}, {32*tt}, v{vA[0]}")
    e("s_waitcnt lgkmcnt(0)")
    stamp(e, P, 1, mode=2)
    srd(e, SW2, 4, 3584 * 1024 * 2)
    srd(e, SH, 12, 2048 * 3584 * 2)
    srd(e, SP, 12, 64 << 20)
    srd(e, SO, 6, 2048 * 1024 * 2)
    e("s_bitcmp1_b32 s2, 3")
    e("s_cbranch_scc1 k2_role1")

    def role(R):
        vq = VQ()
        K0 = 0 if R == 0 else N0
        N = N0 if R == 0 else N1
        def blk(s):
            b0 = (s // 4) * 4
            rem = N - b0
            if rem >= 4: return b0, 4
            b0 = (s // 2) * 2
            if N - b0 >= 2: return b0, 2
            return s, 1
        def gD(s):
            b0, rb = blk(s)
            it = []
            for p in range(4):
                pre = [f"s_add_u32 s{sTW}, s{swo(s-b0,rb)}, {(K0+b0)*64*2048}", f"s_add_u32 m0, s{sWd}, {(s%NS)*16384}"] if p == 0 else []
                it.append((pre, (f"buffer_load_dwordx4 v{vD[p]}, s[{SW2}:{SW2+3}], s{sTW} offen offset:{1024*p} lds", f"D{s}"), []))
            return it
        def gH(s):
            b0, rb = blk(s)
            return [([f"s_add_u32 s{sTH}, s{sho(s-b0,rb)}, {(K0+b0)*4096}"] if j == 0 else [],
                     (f"buffer_load_dwordx4 v[{hr(s,j//2,j%2)}:{hr(s,j//2,j%2)+3}], v{vHo}, s[{SH}:{SH+3}], s{sTH} offen offset:{1024*j}", f"H{s}"), []) for j in range(4)]
        Q = []
        def q(items, earliest): Q.extend((it, earliest) for it in items)
        q(gD(0), -9)
        HD = P.get("hd2", 4)
        for s in range(N):
            q(gH(s), max(-9, 2 * (s - HD) + 1) if s >= HD else -9)
            if s + 1 < N: q(gD(s + 1), 2 * (s + 1 - NS) + 1 if s + 1 >= NS else -9)
        def emit_direct(k):
            for _ in range(k):
                (pre, ld, post), _e = Q.pop(0)
                assert _e < 0
                for x in pre: e(x)
                if pre: e("s_nop 0")
                e(ld[0]); vq.issue(ld[1])
        emit_direct(P.get("pro2b", 12))
        for r in range(ACC, ACC + 64): e(f"v_mov_b32 v{r}, 0")
        def reads(s, sub):
            return [f"ds_read_b64_tr_b16 v[{wf(sub,tt)+2*i}:{wf(sub,tt)+2*i+1}], v{vA[tt]} offset:{(s%NS)*16384+(32*sub+16*i)*256}"
                    for tt in range(8) for i in range(2)]
        def mf(s, sub):
            return [f"{MF} v[{acc(tt,mh)}:{acc(tt,mh)+3}], v[{wf(sub,tt)}:{wf(sub,tt)+3}], v[{hr(s,sub,mh)}:{hr(s,sub,mh)+3}], v[{acc(tt,mh)}:{acc(tt,mh)+3}]"
                    for tt in range(8) for mh in range(2)]
        e(f"s_waitcnt vmcnt({vq.need({'D0'})})")
        e("s_barrier")
        stamp(e, P, 1)
        for x in reads(0, 0): e(x)
        quota = P.get("quota2b", 5)
        rhi = P.get("rhi2", 10)
        def phase(s, sub, Rd, extra):
            ph = 2 * s + sub
            fill = {}
            def add(i, x): fill.setdefault(i, []).append(x)
            for pos, x in zip(spread(len(Rd), 0, rhi), Rd): add(pos, x)
            items = []
            while Q and len(items) < quota and Q[0][1] <= ph:
                items.append(Q.pop(0)[0])
            items += extra
            for pos, (pre, ld, post) in zip(spread(len(items), 1, 15), items):
                for x in pre: add(pos - 1, x)
                add(pos, ld)
            emit_stream(e, vq, mf(s, sub), fill)
        PS = N - P.get("pollback", 3)
        LS = N - 2
        land = [HR + ((N + k) % NH) * 16 for k in range(4)]
        for s in range(N):
            if s == N - 4: stamp(e, P, 2)
            tags = {f"H{s}"}
            ex = []
            if R == 1 and s == LS:
                tags.add("POLL")
            e(f"s_waitcnt vmcnt({vq.need(tags)}) lgkmcnt(0)")
            if R == 1 and s == LS:
                e(f"v_readfirstlane_b32 s8, v{vT}")
                e("s_cmp_lg_u32 s8, 0")
                e("s_cbranch_scc1 k2_flag_ok")
                assert not Q
                e("s_mov_b32 s9, 0x40000")
                e.label("k2_poll")
                e("s_sub_u32 s9, s9, 1")
                e("s_cbranch_scc1 k2_flag_ok")
                e("s_sleep 2")
                e(f"buffer_load_dword v{vT}, v{vZ}, s[{SP}:{SP+3}], s{sFlag} offen sc1")
                e("s_waitcnt vmcnt(0)")
                e(f"v_readfirstlane_b32 s8, v{vT}")
                e("s_cmp_lg_u32 s8, 0")
                e("s_cbranch_scc0 k2_poll")
                e.label("k2_flag_ok")
            def pl(k0):
                out = []
                for j in range(k0, k0 + 4):
                    r = land[j // 4] + (j % 4) * 4
                    pre = [f"s_add_u32 s{sTH}, s{sPart}, {(j//4)*4096}"] if j % 4 == 0 else []
                    out.append((pre, (f"buffer_load_dwordx4 v[{r}:{r+3}], v{vHo}, s[{SP}:{SP+3}], s{sTH} offen offset:{1024*(j%4)} sc1", "PART"), []))
                return out
            exA = pl(0) + pl(4) if (R == 1 and s == LS) else []
            exB = pl(8) + pl(12) if (R == 1 and s == LS) else []
            phase(s, 0, reads(s, 1), exA)
            if s + 1 < N:
                e(f"s_waitcnt vmcnt({vq.need({f'D{s+1}'})}) lgkmcnt(0)")
                e("s_barrier")
            else:
                e("s_waitcnt lgkmcnt(0)")
            if R == 1 and s == PS:
                exB = exB + [([], (f"buffer_load_dword v{vT}, v{vZ}, s[{SP}:{SP+3}], s{sFlag} offen sc1", "POLL"), [])]
            phase(s, 1, reads(s + 1, 0) if s + 1 < N else [], exB)
        assert not Q
        stamp(e, P, 3)
        if R == 0:
            e("s_nop 7")
            for j in range(16):
                if j % 4 == 0: e(f"s_add_u32 s{sTH}, s{sPart}, {(j//4)*4096}")
                e(f"buffer_store_dwordx4 v[{ACC+4*j}:{ACC+4*j+3}], v{vHo}, s[{SP}:{SP+3}], s{sTH} offen offset:{1024*(j%4)} sc1")
            stamp(e, P, 4)
            e("s_waitcnt vmcnt(0)")
            e("s_barrier")
            e(f"s_cmp_lg_u32 s{sWAVE}, 0")
            e("s_cbranch_scc1 k2_fin")
            e(f"v_mov_b32 v{vT}, 1")
            e("s_mov_b64 exec, 1")
            e(f"buffer_store_dword v{vT}, v{vZ}, s[{SP}:{SP+3}], s{sFlag} offen sc1")
            e("s_mov_b64 exec, -1")
            e("s_branch k2_fin")
        else:
            e(f"s_lshl_b32 s{sT}, s{sMT}, 2")
            e(f"s_add_u32 s{sT}, s{sT}, s{sWAVE}")
            e(f"s_lshl_b32 s{sT}, s{sT}, 16")
            e(f"s_lshl_b32 s3, s{sNT}, 8")
            e(f"s_add_u32 s{sT}, s{sT}, s3")
            e(f"s_add_u32 s3, s{sT}, {16*2048}")
            e(f"v_and_b32 v{a}, 15, v{vL}")
            e(f"v_bfe_u32 v{b}, v{vL}, 4, 1")
            e(f"v_lshlrev_b32 v{b}, 5, v{b}")
            e(f"v_lshl_add_u32 v{a}, v{a}, 11, v{b}")
            e(f"v_lshrrev_b32 v{b}, 5, v{vL}")
            e(f"v_lshl_add_u32 v{a}, v{b}, 4, v{a}")
            e("s_waitcnt vmcnt(0)")
            for j in range(16):
                r = land[j // 4] + (j % 4) * 4
                for z in range(2):
                    e(f"v_pk_add_f32 v[{ACC+4*j+2*z}:{ACC+4*j+2*z+1}], v[{ACC+4*j+2*z}:{ACC+4*j+2*z+1}], v[{r+2*z}:{r+2*z+1}]")
            for mh in range(2):
                for tt in range(8):
                    A = acc(tt, mh); D = WF + (mh * 8 + tt) * 2
                    e(f"v_cvt_pk_bf16_f32 v{D}, v{A}, v{A+1}")
                    e(f"v_cvt_pk_bf16_f32 v{D+1}, v{A+2}, v{A+3}")
            e("s_nop 1")
            for mh in range(2):
                for pr in range(4):
                    D = WF + (mh * 8 + pr * 2) * 2
                    e(f"v_permlane16_swap_b32 v{D}, v{D+2}")
                    e(f"v_permlane16_swap_b32 v{D+1}, v{D+3}")
                    e(f"buffer_store_dwordx4 v[{D}:{D+3}], v{a}, s[{SO}:{SO+3}], s{3 if mh else sT} offen offset:{64*pr}")
            stamp(e, P, 4)
    role(0)
    e.raw(".p2align 6")
    e.label("k2_role1")
    role(1)
    e.label("k2_fin")
    if P.get("stamp"): e("s_waitcnt vmcnt(0)")
    stamp(e, P, 5); stamp(e, P, 7, True)
    dump_stamps(e, P, 8, 1, sWAVE, 12)
    e.label("k2_done")
    e("s_endpgm")
    nv = HR + NH * 16
    return kd(n, nv, 100, (nv + 3) // 4 * 4), NS * 16384
```

```python
from gen import kd, srd, stamp, dump_stamps
from gen2 import VQ, emit_stream, spread, MF

PART_OFF = 32 << 20
FLAG_OFF = 48 << 20

def k2c(e, P):
    n = "k2_kernel"
    e.raw(f".globl {n}\n.p2align 8\n.type {n},@function")
    e.label(n)
    vq = VQ()
    SW2, SH, SO, SP = 16, 20, 24, 28
    sWAVE, sMT, sNT, sWk, sHk, sWd, sT, sTH, sTW = 32, 33, 34, 35, 36, 37, 39, 42, 43
    sPo, sPi, sFo, sFi, sROLE = 56, 57, 58, 59, 60
    def sho(j): return 44 + j
    def swo(j, hf): return 48 + 4 * hf + j
    vD0, vD1, vHo, vL, vZ, vOne = 1, 2, 3, 4, 5, 6
    vA = [8, 9, 10, 11]
    vT = 12
    ACC = 16
    WF = 80
    LAND = 144
    NV = 176
    NS = P.get("ns2", 8); NH = 16
    J = P.get("j2", 14)
    N = 28
    def acc(hf, t, mh): return ACC + hf * 32 + (t * 2 + mh) * 4
    def wf(st, sub, t): return WF + st * 32 + (sub * 4 + t) * 4
    def hr(s, sub, mh): return (s % NH) * 16 + (sub * 2 + mh) * 4
    e("s_cmp_ge_u32 s2, 256")
    e("s_cbranch_scc1 k2_done")
    stamp(e, P, 0); stamp(e, P, 6, True)
    e("s_load_dwordx4 s[4:7], s[0:1], 24")
    e("s_load_dwordx2 s[12:13], s[0:1], 48")
    e(f"v_lshrrev_b32 v{vT}, 6, v0")
    e(f"v_and_b32 v{vL}, 63, v0")
    e(f"v_readfirstlane_b32 s{sWAVE}, v{vT}")
    e(f"s_bfe_u32 s8, s2, {4 | (2<<16)}")
    e(f"s_lshr_b32 s9, s2, 6")
    e(f"s_bfe_u32 s{sROLE}, s2, {3 | (1<<16)}")
    e(f"s_bfe_u32 s{sMT}, s2, {1 | (2<<16)}")
    e(f"s_lshl_b32 s{sMT}, s{sMT}, 2")
    e(f"s_add_u32 s{sMT}, s{sMT}, s8")
    e(f"s_and_b32 s{sNT}, s2, 1")
    e(f"s_lshl_b32 s{sNT}, s{sNT}, 2")
    e(f"s_add_u32 s{sNT}, s{sNT}, s9")
    e(f"s_add_u32 s8, s8, s9")
    a, b, c, t = vT, vT + 1, vT + 2, vT + 3
    e(f"v_lshrrev_b32 v{a}, 3, v{vL}")
    e(f"v_and_b32 v{b}, 7, v{vL}")
    e(f"v_lshrrev_b32 v{c}, 4, v{vL}")
    e(f"v_lshlrev_b32 v{c}, 1, v{c}")
    e(f"v_xor_b32 v{b}, v{b}, v{c}")
    e(f"v_lshlrev_b32 v{b}, 4, v{b}")
    e(f"v_lshl_add_u32 v{vD0}, v{a}, 11, v{b}")
    e(f"v_add_u32 v{vD1}, {8*2048-1024}, v{vD0}")
    e(f"v_lshlrev_b32 v{vHo}, 4, v{vL}")
    e(f"v_mov_b32 v{vZ}, 0")
    e(f"v_mov_b32 v{vOne}, 1")
    e(f"s_lshl_b32 s{sWk}, s{sWAVE}, 15")
    e(f"s_lshl_b32 s{sT}, s{sNT}, 8")
    e(f"s_add_u32 s{sWk}, s{sWk}, s{sT}")
    e(f"s_mul_i32 s{sT}, s{sROLE}, {28*64*2048 + 128}")
    e(f"s_add_u32 s{sWk}, s{sWk}, s{sT}")
    e(f"s_lshl_b32 s{sT}, s{sMT}, 2")
    e(f"s_add_u32 s{sT}, s{sT}, s{sWAVE}")
    e(f"s_mul_i32 s{sHk}, s{sT}, {224*1024}")
    e(f"s_mul_i32 s{sT}, s{sROLE}, {28*4096}")
    e(f"s_add_u32 s{sHk}, s{sHk}, s{sT}")
    e(f"s_lshl_b32 s{sWd}, s{sWAVE}, 11")
    for j in range(4):
        e(f"s_add_u32 s9, s8, {j}")
        e(f"s_and_b32 s9, s9, 3")
        e(f"s_lshl_b32 s10, s9, 12")
        e(f"s_add_u32 s{sho(j)}, s10, s{sHk}")
        e(f"s_lshl_b32 s10, s9, 17")
        e(f"s_add_u32 s{swo(j,0)}, s10, s{sWk}")
        e(f"s_xor_b32 s{swo(j,1)}, s{swo(j,0)}, 128")
    e(f"s_lshl_b32 s{sT}, s2, 2")
    e(f"s_add_u32 s{sT}, s{sT}, s{sWAVE}")
    e(f"s_lshl_b32 s{sFo}, s{sT}, 7")
    e(f"s_add_u32 s{sFo}, s{sFo}, {FLAG_OFF}")
    e(f"s_xor_b32 s{sFi}, s{sFo}, {32<<7}")
    e(f"s_lshl_b32 s{sPo}, s{sT}, 13")
    e(f"s_add_u32 s{sPo}, s{sPo}, {PART_OFF}")
    e(f"s_xor_b32 s{sPi}, s{sPo}, {32<<13}")
    e("s_waitcnt lgkmcnt(0)")
    stamp(e, P, 1, mode=2)
    srd(e, SW2, 4, 3584 * 1024 * 2)
    srd(e, SH, 12, 2048 * 3584 * 2)
    seq = []
    for s in range(N - J): seq += [(s, 1), (s, 0)]
    seq += [(s, 1) for s in range(N - J, N)]
    PUB = len(seq)
    seq += [(s, 0) for s in range(N - J, N)]
    NSEQ = len(seq)
    def gD(i):
        s, hf = seq[i]
        return [([f"s_add_u32 s{sTW}, s{swo(s%4,hf)}, {(s//4)*4*64*2048}", f"s_add_u32 m0, s{sWd}, {(i%NS)*8192}"],
                 (f"buffer_load_dwordx4 v{vD0}, s[{SW2}:{SW2+3}], s{sTW} offen lds", f"D{i}"), []),
                ([], (f"buffer_load_dwordx4 v{vD1}, s[{SW2}:{SW2+3}], s{sTW} offen offset:1024 lds", f"D{i}"), [])]
    def gH(s):
        return [([f"s_add_u32 s{sTH}, s{sho(s%4)}, {(s//4)*4*4096}"] if j == 0 else [],
                 (f"buffer_load_dwordx4 a[{hr(s,j//2,j%2)}:{hr(s,j//2,j%2)+3}], v{vHo}, s[{SH}:{SH+3}], s{sTH} offen offset:{1024*j}", f"H{s}"), []) for j in range(4)]
    Q = []
    def q(items, earliest): Q.extend((it, earliest) for it in items)
    lastuse = {}
    for i, (s, hf) in enumerate(seq): lastuse[s] = i
    q(gD(0), -9)
    seen = set()
    for i, (s, hf) in enumerate(seq):
        if i + 1 < NSEQ: q(gD(i + 1), i + 1 - NS if i + 1 >= NS else -9)
        if s not in seen:
            seen.add(s)
            q(gH(s), lastuse[s - NH] + 1 if s >= NH else -9)
    def emit_direct(k):
        for _ in range(k):
            (pre, ld, post), _e = Q.pop(0)
            assert _e < 0
            for x in pre: e(x)
            if pre: e("s_nop 0")
            e(ld[0]); vq.issue(ld[1])
    emit_direct(P.get("pro2a", 12))
    stamp(e, P, 2, mode=2)
    srd(e, SP, 12, 64 << 20)
    srd(e, SO, 6, 2048 * 1024 * 2)
    e(f"v_lshrrev_b32 v{a}, 2, v{vL}")
    e(f"v_lshlrev_b32 v{vA[0]}, 7, v{a}")
    e(f"v_bfe_u32 v{c}, v{vL}, 3, 2")
    e(f"v_lshl_add_u32 v{vA[0]}, v{c}, 5, v{vA[0]}")
    e(f"v_and_b32 v{c}, 3, v{vL}")
    e(f"v_lshl_add_u32 v{vA[0]}, v{c}, 3, v{vA[0]}")
    for tt in range(1, 4): e(f"v_xor_b32 v{vA[tt]}, {32*tt}, v{vA[0]}")
    for r in range(ACC, ACC + 64): e(f"v_mov_b32 v{r}, 0")
    def reads(i):
        st = i % 2
        return [f"ds_read_b64_tr_b16 v[{wf(st,sub,tt)+2*z}:{wf(st,sub,tt)+2*z+1}], v{vA[tt]} offset:{(i%NS)*8192+(32*sub+16*z)*128}"
                for sub in range(2) for tt in range(4) for z in range(2)]
    def mf(i):
        st = i % 2; s, hf = seq[i]
        return [f"{MF} v[{acc(hf,tt,mh)}:{acc(hf,tt,mh)+3}], v[{wf(st,sub,tt)}:{wf(st,sub,tt)+3}], a[{hr(s,sub,mh)}:{hr(s,sub,mh)+3}], v[{acc(hf,tt,mh)}:{acc(hf,tt,mh)+3}]"
                for sub in range(2) for tt in range(4) for mh in range(2)]
    stamp(e, P, 3, mode=2)
    e(f"s_waitcnt vmcnt({vq.need({'D0'})})")
    stamp(e, P, 4, mode=2)
    e("s_barrier")
    stamp(e, P, 5, mode=2)
    stamp(e, P, 1)
    for x in reads(0): e(x)
    quota = P.get("quota2", 6)
    FS = PUB + P.get("fs2", 5)
    PS = PUB + P.get("ps2", 8)
    CS = PUB + P.get("cs2", 11)
    e.raw(".p2align 3")
    for i in range(NSEQ):
        s, hf = seq[i]
        if i == PUB: stamp(e, P, 2)
        tags = {f"D{i+1}", f"H{s}"}
        if i == FS: tags.add("PST")
        if i == CS: tags.add("POLL")
        e(f"s_waitcnt vmcnt({vq.need(tags)}) lgkmcnt(0)")
        if i < NSEQ - 1: e("s_barrier")
        if i == FS:
            e("s_mov_b64 exec, 1")
            e(f"buffer_store_dword v{vOne}, v{vZ}, s[{SP}:{SP+3}], s{sFo} offen sc1"); vq.issue("FLAG")
            e("s_mov_b64 exec, -1")
        if i == CS:
            e(f"v_readfirstlane_b32 s8, v{vT}")
            e("s_cmp_lg_u32 s8, 0")
            e("s_cbranch_scc1 k2_flag_ok")
            e("s_mov_b32 s9, 0x40000")
            e.label("k2_poll")
            e("s_sub_u32 s9, s9, 1")
            e("s_cbranch_scc1 k2_flag_ok")
            e("s_sleep 1")
            e(f"buffer_load_dword v{vT}, v{vZ}, s[{SP}:{SP+3}], s{sFi} offen sc1")
            e("s_waitcnt vmcnt(0)")
            e(f"v_readfirstlane_b32 s8, v{vT}")
            e("s_cmp_lg_u32 s8, 0")
            e("s_cbranch_scc0 k2_poll")
            e.label("k2_flag_ok")
        fill = {}
        def add(k, x): fill.setdefault(k, []).append(x)
        R = reads(i + 1) if i < NSEQ - 1 else []
        for pos, x in zip(spread(len(R), 0, 11), R): add(pos, x)
        items = []
        lo = 0
        if i == PUB:
            for j in range(8):
                pre = [f"s_add_u32 s{sTH}, s{sPo}, 4096"] if j == 4 else []
                items.append((pre, (f"buffer_store_dwordx4 v[{ACC+32+4*j}:{ACC+32+4*j+3}], v{vHo}, s[{SP}:{SP+3}], s{sTH if j >= 4 else sPo} offen offset:{1024*(j%4)} sc1", "PST"), []))
            lo = 1
        elif i == CS:
            for j in range(8):
                pre = [f"s_add_u32 s{sTH}, s{sPi}, 4096"] if j == 4 else []
                items.append((pre, (f"buffer_load_dwordx4 v[{LAND+4*j}:{LAND+4*j+3}], v{vHo}, s[{SP}:{SP+3}], s{sTH if j >= 4 else sPi} offen offset:{1024*(j%4)} sc1", "PART"), []))
        else:
            while Q and len(items) < quota and Q[0][1] <= i:
                items.append(Q.pop(0)[0])
            if i == PS:
                items.append(([], (f"buffer_load_dword v{vT}, v{vZ}, s[{SP}:{SP+3}], s{sFi} offen sc1", "POLL"), []))
        for pos, (pre, ld, post) in zip(spread(len(items), lo, 15), items):
            for x in pre: add(pos - 1, x)
            add(pos, ld)
        emit_stream(e, vq, mf(i), fill)
    assert not Q
    stamp(e, P, 3)
    e(f"s_lshl_b32 s{sT}, s{sMT}, 2")
    e(f"s_add_u32 s{sT}, s{sT}, s{sWAVE}")
    e(f"s_lshl_b32 s{sT}, s{sT}, 16")
    e(f"s_lshl_b32 s3, s{sNT}, 8")
    e(f"s_add_u32 s{sT}, s{sT}, s3")
    e(f"s_lshl_b32 s3, s{sROLE}, 7")
    e(f"s_add_u32 s{sT}, s{sT}, s3")
    e(f"s_add_u32 s3, s{sT}, {16*2048}")
    e(f"v_and_b32 v{a}, 15, v{vL}")
    e(f"v_bfe_u32 v{b}, v{vL}, 4, 1")
    e(f"v_lshlrev_b32 v{b}, 5, v{b}")
    e(f"v_lshl_add_u32 v{a}, v{a}, 11, v{b}")
    e(f"v_lshrrev_b32 v{b}, 5, v{vL}")
    e(f"v_lshl_add_u32 v{a}, v{b}, 4, v{a}")
    e("s_waitcnt vmcnt(0)")
    for j in range(16):
        e(f"v_pk_add_f32 v[{ACC+2*j}:{ACC+2*j+1}], v[{ACC+2*j}:{ACC+2*j+1}], v[{LAND+2*j}:{LAND+2*j+1}]")
    for mh in range(2):
        for tt in range(4):
            A = acc(0, tt, mh); D = WF + (mh * 4 + tt) * 2
            e(f"v_cvt_pk_bf16_f32 v{D}, v{A}, v{A+1}")
            e(f"v_cvt_pk_bf16_f32 v{D+1}, v{A+2}, v{A+3}")
    e("s_nop 1")
    for mh in range(2):
        for pr in range(2):
            D = WF + (mh * 4 + pr * 2) * 2
            e(f"v_permlane16_swap_b32 v{D}, v{D+2}")
            e(f"v_permlane16_swap_b32 v{D+1}, v{D+3}")
            e(f"buffer_store_dwordx4 v[{D}:{D+3}], v{a}, s[{SO}:{SO+3}], s{3 if mh else sT} offen offset:{64*pr}")
    stamp(e, P, 4)
    if P.get("stamp"): e("s_waitcnt vmcnt(0)")
    stamp(e, P, 5); stamp(e, P, 7, True)
    dump_stamps(e, P, 8, 1, sWAVE, 12)
    e.label("k2_done")
    e("s_endpgm")
    return kd(n, NV + 256, 100, NV), NS * 8192
```

```python
import sys, json
from gen import HDR, E, kd, srd, dump_stamps
def stamp(e, P, i, real=False, mode=1):
    m = P.get("stamp")
    if not m: return
    if i in (0, 6, 7) or (m - 1) % 2 + 1 == mode:
        e(f"s_memrealtime s[{64+2*i}:{65+2*i}]" if (real or m >= 3) else f"s_memtime s[{64+2*i}:{65+2*i}]")
from gen2 import VQ, emit_stream, spread, MF

PART_OFF = 32 << 20
PFLAG_OFF = 48 << 20
HFLAG_OFF = 49 << 20

def fused(e, P, n):
    e.raw(f".globl {n}\n.p2align 8\n.type {n},@function")
    e.label(n)
    vq = VQ()
    SM = P.get("stamp")
    SX, SW1, SW3, SH, SW2, SDB = 16, 20, 24, 28, 52, 88
    sWAVE, sMT, sFT = 32, 33, 34
    sXk, sWk = 35, 37
    sXd, sWd, sT = 38, 39, 43
    sC1, sC2 = 44, 46
    sO = 48; sOs = 56
    sP2 = 58
    sKW = [40, 41]; sKH = 42; sClsW, sClsH, sWd2 = 59, 62, 63
    sFHo, sFHi = 82, 83
    sPo, sPi, sFo, sFi = 97, 98, 99, 100
    sMT2, sNT2, sROLE = 14, 15, 101
    vXb = [24, 25, 26, 27]
    vX = [1, 2, 3, 4]
    vW0, vW1 = 5, 6
    vXa = [[7, 8], [9, 10]]
    vWa = 11
    vD = [[12, 13], [14, 0]]
    vP2, vArr, vDum = 28, 29, 31
    vL = 15
    vT = 16
    ACC = 32
    def acc(ft, mat, mt): return ACC + ((ft * 2 + mat) * 4 + mt) * 4
    def fx(st, mt): return st * 72 + mt * 4
    def fw(st, ft, mat): return st * 72 + 16 + (ft * 2 + mat) * 4
    XBASE = 65536
    e("s_cmp_ge_u32 s2, 256")
    e("s_cbranch_scc1 k_done")
    stamp(e, P, 0); stamp(e, P, 6, True)
    e("s_load_dwordx8 s[4:11], s[0:1], 0")
    e("s_load_dwordx2 s[12:13], s[0:1], 48")
    e("s_load_dwordx4 s[84:87], s[0:1], 32")
    e(f"v_lshrrev_b32 v{vT}, 6, v0")
    e(f"v_and_b32 v{vL}, 63, v0")
    e(f"v_readfirstlane_b32 s{sWAVE}, v{vT}")
    e(f"s_and_b32 s{sT}, s2, 7")
    e(f"s_lshr_b32 s3, s2, 3")
    e(f"s_and_b32 s{sMT}, s{sT}, 1")
    e(f"s_lshl_b32 s{sMT}, s{sMT}, 2")
    e(f"s_and_b32 s{sFT}, s3, 3")
    e(f"s_add_u32 s{sMT}, s{sMT}, s{sFT}")
    e(f"s_lshr_b32 s{sFT}, s{sT}, 1")
    e(f"s_lshl_b32 s{sFT}, s{sFT}, 3")
    e(f"s_lshr_b32 s{sO}, s3, 2")
    e(f"s_add_u32 s{sFT}, s{sFT}, s{sO}")
    a, b, c, t = vT, vT + 1, vT + 2, vT + 3
    e(f"v_lshrrev_b32 v{a}, 3, v{vL}")
    e(f"v_and_b32 v{b}, 7, v{vL}")
    e(f"v_lshrrev_b32 v{c}, 4, v{vL}")
    e(f"v_xor_b32 v{t}, v{b}, v{c}")
    e(f"v_lshlrev_b32 v{t}, 4, v{t}")
    e(f"v_lshl_add_u32 v{vX[0]}, v{a}, 11, v{t}")
    e(f"v_xor_b32 v{t}, 64, v{t}")
    e(f"v_lshl_add_u32 v{vX[1]}, v{a}, 11, v{t}")
    e(f"v_add_u32 v{vX[1]}, {8*2048-1024}, v{vX[1]}")
    e(f"v_add_u32 v{vX[2]}, {16*2048-2048}, v{vX[0]}")
    e(f"v_add_u32 v{vX[3]}, {16*2048-2048}, v{vX[1]}")
    e(f"v_bfe_u32 v{c}, v0, 6, 1")
    e(f"v_lshlrev_b32 v{c}, 3, v{c}")
    e(f"v_sub_u32 v{c}, v{vL}, v{c}")
    e(f"v_and_b32 v{c}, 63, v{c}")
    e(f"v_mul_u32_u24 v{a}, 37, v{c}")
    e(f"v_lshrrev_b32 v{a}, 9, v{a}")
    e(f"v_mul_u32_u24 v{b}, 14, v{a}")
    e(f"v_sub_u32 v{b}, v{c}, v{b}")
    e(f"s_and_b32 s{sO+1}, s{sFT}, 1")
    e(f"s_lshl_b32 s{sO+1}, s{sO+1}, 1")
    e(f"v_add_u32 v{b}, s{sO+1}, v{b}")
    e(f"v_subrev_u32 v{t}, 14, v{b}")
    e(f"v_min_u32 v{b}, v{b}, v{t}")
    e(f"v_mul_u32_u24 v{a}, 7168, v{a}")
    e(f"v_cmp_gt_u32 vcc, 56, v{c}")
    e(f"v_lshl_add_u32 v{vW0}, v{b}, 4, v{a}")
    e(f"v_mov_b32 v{t}, 0x40000000")
    e(f"v_cndmask_b32 v{vW0}, v{t}, v{vW0}, vcc")
    e(f"v_add_u32 v{vW1}, {4*7168-1024}, v{vW0}")
    e(f"s_lshl_b32 s{sXk}, s{sMT}, 19")
    e(f"s_lshl_b32 s{sO}, s{sWAVE}, 17")
    e(f"s_add_u32 s{sXk}, s{sXk}, s{sO}")
    for p in range(4): e(f"v_add_u32 v{vXb[p]}, 0x10000, v{vX[p]}")
    e(f"s_mul_i32 s{sWk}, s{sWAVE}, {8*7168}")
    e(f"s_mul_i32 s{sO}, s{sFT}, 224")
    e(f"s_add_u32 s{sWk}, s{sWk}, s{sO}")
    TAB = P.get("tab1") or [[0,1,2,3,7,4,5,6,11,8,9,10,15,12,13,14],
           [1,4,0,2,3,8,5,6,7,12,9,10,11,13,14,15],
           [2,0,5,1,3,4,9,6,7,8,13,10,11,12,14,15],
           [3,0,1,6,2,4,5,10,7,8,9,14,11,12,13,15]]
    for tb in TAB: assert sorted(tb) == list(range(16))
    enc = [sum(u << (4 * i) for i, u in enumerate(tb)) for tb in TAB]
    sTab = 60
    e(f"s_and_b32 s{sO}, s3, 3")
    e(f"s_lshr_b32 s{sO+1}, s3, 2")
    e(f"s_add_u32 s{sO}, s{sO}, s{sO+1}")
    e(f"s_and_b32 s{sO}, s{sO}, 3")
    e(f"s_mov_b32 s{sTab}, {enc[0] & 0xffffffff}")
    e(f"s_mov_b32 s{sTab+1}, {enc[0] >> 32}")
    for c_ in range(1, 4):
        e(f"s_cmp_eq_u32 s{sO}, {c_}")
        e(f"s_cselect_b32 s{sTab}, {enc[c_] & 0xffffffff}, s{sTab}")
        e(f"s_cselect_b32 s{sTab+1}, {enc[c_] >> 32}, s{sTab+1}")
    e(f"s_lshl_b32 s{sXd}, s{sWAVE}, 13")
    e(f"s_add_u32 s{sXd}, s{sXd}, {XBASE}")
    e(f"s_lshl_b32 s{sWd}, s{sWAVE}, 12")
    e("s_waitcnt lgkmcnt(0)")
    srd(e, SX, 4, 2048 * 1024 * 2)
    srd(e, SW1, 6, 1024 * 3584 * 2)
    srd(e, SW3, 8, 1024 * 3584 * 2)
    def gX(v, half):
        so = 80
        it = []
        for p in range(4):
            pre = []
            if p == 0:
                if half == 0:
                    pre += [f"s_bfe_u32 s{so}, s{sTab + v//8}, {(4*(v%8)) | (4<<16)}", f"s_lshl_b32 s{so}, s{so}, 7", f"s_add_u32 s{so}, s{so}, s{sXk}"]
                pre += [f"s_add_u32 m0, s{sXd}, {(v%3)*32768 + half*4096}"]
            it.append((pre, (f"buffer_load_dwordx4 v{(vXb if half else vX)[p]}, s[{SX}:{SX+3}], s{so} offen offset:{1024*p} lds", f"X{v}"), []))
        return it
    def gW(s):
        it = []
        sw = 81; v = s // 2
        for p in range(4):
            S = SW3 if p >= 2 else SW1
            pre = []
            if p == 0:
                if s % 2 == 0:
                    pre += [f"s_bfe_u32 s{sw}, s{sTab + v//8}, {(4*(v%8)) | (4<<16)}", f"s_mul_i32 s{sw}, s{sw}, {64*7168}", f"s_add_u32 s{sw}, s{sw}, s{sWk}"]
                else:
                    pre += [f"s_add_u32 s{sw}, s{sw}, {32*7168}"]
            if p % 2 == 0: pre += [f"s_add_u32 m0, s{sWd}, {(s%4)*16384 + (p//2)*2048}"]
            it.append((pre, (f"buffer_load_dwordx4 v{vW1 if p%2 else vW0}, s[{S}:{S+3}], s{sw} offen offset:{1024*(p%2)} lds", f"W{s}"), []))
        return it
    N = 28; J = P.get("j2", 14); NH = 16; NS = 20
    B = P.get("rb2", 7)
    seq = []
    for s in range(N - J): seq += [(s, 1), (s, 0)]
    seq += [(s, 1) for s in range(N - J, N)]
    PUB = len(seq)
    seq += [(s, 0) for s in range(N - J, N)]
    NSEQ = len(seq)
    SLOT = [12, 13, 14, 15, 0, 1, 2, 3, 16, 17, 18, 19, 4, 5, 6, 7, 8, 9, 10, 11]
    SAV = [27] * 4 + [28] * 2 + [29] * 6 + [30] * 2 + [31] * 6
    def run(sreg, scls, s, unit):
        if s % B == 0: return [f"s_add_u32 s{sreg}, s{scls}, {s*unit}"]
        bb = (s // B) * B * unit
        return [f"s_add_u32 s{sreg}, s{sreg}, {unit}", f"s_cmp_eq_u32 s{sreg}, {bb + B*unit}", f"s_cselect_b32 s{sreg}, {bb}, s{sreg}"]
    def gD(i):
        s, hf = seq[i]
        return [(run(sKW[hf], sClsW, s, 131072) + [f"s_add_u32 m0, s{sWd2}, {SLOT[i%NS]*8192}"],
                 (f"buffer_load_dwordx4 v{vD[hf][0]}, s[{SW2}:{SW2+3}], s{sKW[hf]} offen lds", f"D{i}"), []),
                ([], (f"buffer_load_dwordx4 v{vD[hf][1]}, s[{SW2}:{SW2+3}], s{sKW[hf]} offen offset:1024 lds", f"D{i}"), [])]
    Q = []
    def q(items, earliest): Q.extend((it, earliest) for it in items)
    q(gX(0, 0), -9); q(gW(0), -9); q(gX(0, 1), -9)
    for s in range(-3, 28):
        q(gW(s + 4), s if s >= 0 else -9)
        v, half = ((s + 5) // 2, 0) if s % 2 else ((s + 4) // 2, 1)
        if v <= 15: q(gX(v, half), (2 * (v - 3) + 1) if v >= 3 else -9)
    NPRE = P.get("npre", 20)
    for i in range(NPRE): q(gD(i), SAV[i])
    def emit_direct(k):
        for _ in range(k):
            (pre, ld, post), _e = Q.pop(0)
            for x in pre: e(x)
            if pre: e("s_nop 0")
            e(ld[0]); vq.issue(ld[1])
    emit_direct(12)
    srd(e, SH, 12, 64 << 20)
    srd(e, SW2, 10, 1024 * 3584 * 2)
    srd(e, SDB, 86, 256)
    e(f"s_and_b32 s{sROLE}, s2, 1")
    e(f"s_bfe_u32 s{sMT2}, s2, {1 | (2<<16)}")
    e(f"s_lshl_b32 s{sMT2}, s{sMT2}, 2")
    e(f"s_and_b32 s{sO}, s3, 3")
    e(f"s_add_u32 s{sMT2}, s{sMT2}, s{sO}")
    e(f"s_lshr_b32 s{sNT2}, s3, 2")
    e(f"s_lshl_b32 s{sT}, s{sMT}, 2")
    e(f"s_add_u32 s{sT}, s{sT}, s{sWAVE}")
    e(f"s_lshl_b32 s{sT}, s{sT}, 8")
    e(f"s_lshr_b32 s{sFHo}, s{sFT}, 4")
    e(f"s_lshl_b32 s{sFHo}, s{sFHo}, 7")
    e(f"s_add_u32 s{sT}, s{sT}, s{sFHo}")
    e(f"s_and_b32 s{sFHo}, s{sFT}, 15")
    e(f"s_lshl_b32 s{sFHo}, s{sFHo}, 2")
    e(f"s_add_u32 s{sFHo}, s{sFHo}, s{sT}")
    e(f"s_add_u32 s{sFHo}, s{sFHo}, {HFLAG_OFF}")
    e(f"s_lshl_b32 s{sT}, s2, 2")
    e(f"s_add_u32 s{sT}, s{sT}, s{sWAVE}")
    e(f"s_lshl_b32 s{sFo}, s{sT}, 7")
    e(f"s_add_u32 s{sFo}, s{sFo}, {PFLAG_OFF}")
    e(f"s_xor_b32 s{sFi}, s{sFo}, {4<<7}")
    e(f"s_lshl_b32 s{sPo}, s{sT}, 13")
    e(f"s_add_u32 s{sPo}, s{sPo}, {PART_OFF}")
    e(f"s_xor_b32 s{sPi}, s{sPo}, {4<<13}")
    e(f"v_mov_b32 v{vDum}, 0")
    e("s_mov_b64 exec, 1")
    e(f"buffer_store_dword v{vDum}, v{vDum}, s[{SH}:{SH+3}], s{sFHo} offen sc1"); vq.issue("FZ")
    e(f"buffer_store_dword v{vDum}, v{vDum}, s[{SH}:{SH+3}], s{sFo} offen sc1"); vq.issue("FZ")
    e("s_mov_b64 exec, -1")
    e(f"s_lshl_b32 s{sFHi}, s{sMT2}, 1")
    e(f"s_lshr_b32 s{sT}, s{sWAVE}, 1")
    e(f"s_add_u32 s{sFHi}, s{sFHi}, s{sT}")
    e(f"s_lshl_b32 s{sFHi}, s{sFHi}, 1")
    e(f"s_add_u32 s{sFHi}, s{sFHi}, s{sROLE}")
    e(f"s_lshl_b32 s{sFHi}, s{sFHi}, 7")
    e(f"s_add_u32 s{sFHi}, s{sFHi}, {HFLAG_OFF}")
    CL = {4: lambda a_, b_: (a_ + b_) % 4, 7: lambda a_, b_: (b_ + 2 * a_) % 7,
          14: lambda a_, b_: (7 * b_ // 4 + [0, 3, 7, 10][a_]) % 14, 28: lambda a_, b_: (7 * b_ // 2 + 7 * a_) % 28, 1: lambda a_, b_: 0,
          2: lambda a_, b_: (a_ + b_) % 2}[B]
    words = [0] * 6
    for idx in range(32): words[idx // 6] |= CL(idx & 3, idx >> 2) << (5 * (idx % 6))
    e(f"s_mul_i32 s{sO}, s3, 43")
    e(f"s_lshr_b32 s{sO}, s{sO}, 8")
    e(f"s_mul_i32 s{sO+1}, s{sO}, 6")
    e(f"s_sub_u32 s{sO+1}, s3, s{sO+1}")
    e(f"s_mul_i32 s{sO+1}, s{sO+1}, 5")
    e(f"s_mov_b32 s{sClsW}, {words[0]}")
    for w_ in range(1, 6):
        e(f"s_cmp_eq_u32 s{sO}, {w_}")
        e(f"s_cselect_b32 s{sClsW}, {words[w_]}, s{sClsW}")
    e(f"s_lshr_b32 s{sClsW}, s{sClsW}, s{sO+1}")
    e(f"s_and_b32 s{sClsW}, s{sClsW}, 31")
    e(f"s_lshl_b32 s{sClsH}, s{sClsW}, 12")
    e(f"s_lshl_b32 s{sClsW}, s{sClsW}, 17")
    e(f"s_lshl_b32 s{sWd2}, s{sWAVE}, 11")
    e(f"v_lshrrev_b32 v{a}, 3, v{vL}")
    e(f"v_and_b32 v{b}, 7, v{vL}")
    e(f"v_lshrrev_b32 v{c}, 4, v{vL}")
    e(f"v_lshlrev_b32 v{c}, 1, v{c}")
    e(f"v_xor_b32 v{b}, v{b}, v{c}")
    e(f"v_lshlrev_b32 v{b}, 4, v{b}")
    e(f"v_lshl_add_u32 v{a}, v{a}, 11, v{b}")
    e(f"s_lshl_b32 s{sO}, s{sWAVE}, 15")
    e(f"s_lshl_b32 s{sT}, s{sNT2}, 8")
    e(f"s_add_u32 s{sO}, s{sO}, s{sT}")
    e(f"s_mul_i32 s{sT}, s{sROLE}, {28*64*2048 + 128}")
    e(f"s_add_u32 s{sO}, s{sO}, s{sT}")
    e(f"v_add_u32 v{vD[0][0]}, s{sO}, v{a}")
    e(f"v_add_u32 v{vD[0][1]}, {8*2048-1024}, v{vD[0][0]}")
    e(f"v_xor_b32 v{vD[1][0]}, 128, v{vD[0][0]}")
    e(f"v_xor_b32 v{vD[1][1]}, 128, v{vD[0][1]}")
    e(f"v_and_b32 v{a}, 15, v{vL}")
    e(f"v_lshrrev_b32 v{b}, 4, v{vL}")
    e(f"v_bfe_u32 v{c}, v{vL}, 1, 3")
    e(f"v_xor_b32 v{c}, v{c}, v{b}")
    e(f"v_lshlrev_b32 v{c}, 4, v{c}")
    e(f"v_lshl_add_u32 v{c}, v{a}, 7, v{c}")
    e(f"v_add_u32 v{vXa[0][0]}, s{sXd}, v{c}")
    e(f"v_xor_b32 v{vXa[1][0]}, 64, v{vXa[0][0]}")
    e(f"v_add_u32 v{vXa[0][1]}, 0x10000, v{vXa[0][0]}")
    e(f"v_add_u32 v{vXa[1][1]}, 0x10000, v{vXa[1][0]}")
    e(f"v_lshlrev_b32 v{vWa}, 12, v{b}")
    e(f"v_bfe_u32 v{c}, v{vL}, 4, 1")
    e(f"v_lshl_add_u32 v{vWa}, v{c}, 7, v{vWa}")
    e(f"v_bfe_u32 v{c}, v{vL}, 2, 2")
    e(f"v_mul_u32_u24 v{c}, 224, v{c}")
    e(f"v_add_u32 v{vWa}, v{vWa}, v{c}")
    e(f"v_and_b32 v{c}, 3, v{vL}")
    e(f"v_lshl_add_u32 v{vWa}, v{c}, 3, v{vWa}")
    e(f"v_cmp_gt_u32 vcc, 56, v{vL}")
    e(f"v_lshlrev_b32 v{vP2}, 7, v{vL}")
    e(f"v_mov_b32 v{t}, 0x40000000")
    e(f"v_cndmask_b32 v{vP2}, v{t}, v{vP2}, vcc")
    e(f"s_lshl_b32 s{sP2}, s2, 2")
    e(f"s_add_u32 s{sP2}, s{sP2}, s{sWAVE}")
    e(f"s_mul_i32 s{sP2}, s{sP2}, 7168")
    e(f"v_lshlrev_b32 v30, 2, v{vL}")
    e(f"v_mov_b32 v{vT+4}, 1")
    e(f"s_and_b32 s36, s2, 63")
    e(f"s_lshl_b32 s36, s36, 2")
    PFS = {}
    if P.get("pf2", 1):
        PFS.setdefault(P.get("pf2s", 20), []).append((f"buffer_load_dword v{vDum}, v{vP2}, s[{SW2}:{SW2+3}], s{sP2} offen", "PF"))
    PFS.setdefault(P.get("arrs", 24), []).append((f"buffer_load_dword v{vArr}, v30, s[{SDB}:{SDB+3}], 0 offen sc1", "ARR"))
    for r in range(ACC, 256):
        e(f"v_mov_b32 v{r}, 0")
    e(f"s_mov_b32 s{sC1}, 0xbfb8aa3b")
    e(f"s_mov_b32 s{sC1+1}, 0xbfb8aa3b")
    e(f"s_mov_b32 s{sC2}, 1.0")
    e(f"s_mov_b32 s{sC2+1}, 1.0")
    emit_direct(P.get("pro2", 16))
    def reads(s):
        st = s % 2; u = s // 2
        xa = vXa[s % 2][1 if u % 3 == 2 else 0]
        xo = 32768 if u % 3 == 1 else 0
        R = [f"ds_read_b128 a[{fx(st,mt)}:{fx(st,mt)+3}], v{xa} offset:{xo+mt*2048}" for mt in range(4)]
        for ft in range(7):
            for mat in range(2):
                for i in range(2):
                    r = fw(st, ft, mat) + 2 * i
                    R.append(f"ds_read_b64_tr_b16 a[{r}:{r+1}], v{vWa} offset:{(s%4)*16384+mat*2048+i*1024+ft*32}")
        return R
    def mf(s):
        st = s % 2
        return [f"{MF} v[{acc(ft,mat,mt)}:{acc(ft,mat,mt)+3}], a[{fw(st,ft,mat)}:{fw(st,ft,mat)+3}], a[{fx(st,mt)}:{fx(st,mt)+3}], v[{acc(ft,mat,mt)}:{acc(ft,mat,mt)+3}]"
                for ft in range(7) for mat in range(2) for mt in range(4)]
    e(f"s_waitcnt vmcnt({vq.need({'X0','W0'})})")
    e("s_barrier")
    stamp(e, P, 1)
    for x in reads(0): e(x)
    quota = P.get("quota", 12)
    r_lo, r_hi = P.get("rpos", [0, 44])
    d_lo, d_hi = P.get("dpos", [1, 50])
    AS = P.get("arra", 4)
    e.raw(".p2align 3")
    for s in range(32):
        tags = {f"W{s+1}", f"X{(s+1)//2}"}
        if s == AS: tags.add("FZ")
        if s < 31: e(f"s_waitcnt vmcnt({vq.need(tags)}) lgkmcnt(0)")
        else: e("s_waitcnt lgkmcnt(0)")
        e("s_barrier")
        if s == AS:
            e(f"s_cmp_lg_u32 s{sWAVE}, 0")
            e("s_cbranch_scc1 k_noarr")
            e("s_mov_b64 exec, 1")
            e(f"buffer_atomic_add v{vT+4}, v{vDum}, s[{SDB}:{SDB+3}], s36 offen sc1")
            e("s_mov_b64 exec, -1")
            e.label("k_noarr")
        fill = {}
        def add(i, x): fill.setdefault(i, []).append(x)
        R = reads(s + 1) if s < 31 else []
        for pos, x in zip(spread(len(R), r_lo, r_hi), R): add(pos, x)
        items = []
        while Q and len(items) < quota and Q[0][1] <= s:
            items.append(Q.pop(0)[0])
        for x in PFS.get(s, []): add(0, x)
        for pos, (pre, ld, post) in zip(spread(len(items), d_lo, d_hi), items):
            for j, x in enumerate(pre): add(max(-1, pos - 1 - (len(pre) - 1 - j) // 2), x)
            add(pos, ld)
        emit_stream(e, vq, mf(s), fill)
    assert not Q
    stamp(e, P, 2)
    e(f"s_waitcnt vmcnt({vq.need({'ARR'})})")
    e(f"v_cmp_gt_u32 vcc, 4, v{vArr}")
    e("s_cbranch_vccz k_arr_ok")
    e("s_mov_b32 s3, 0x20000")
    e.label("k_arr")
    e("s_sub_u32 s3, s3, 1")
    e("s_cbranch_scc1 k_arr_ok")
    e(f"buffer_load_dword v{vArr}, v30, s[{SDB}:{SDB+3}], 0 offen sc1")
    e("s_waitcnt vmcnt(0)")
    e(f"v_cmp_gt_u32 vcc, 4, v{vArr}")
    e("s_cbranch_vccnz k_arr")
    e.label("k_arr_ok")
    e(f"s_lshl_b32 s{sT}, s{sMT}, 3")
    e(f"s_lshl_b32 s3, s{sWAVE}, 1")
    e(f"s_add_u32 s{sT}, s{sT}, s3")
    e(f"s_mul_i32 s{sO}, s{sT}, {224*1024}")
    e(f"s_mul_i32 s3, s{sFT}, 7")
    e(f"s_lshr_b32 s3, s3, 1")
    e(f"s_lshl_b32 s3, s3, 11")
    e(f"s_add_u32 s{sO}, s{sO}, s3")
    e(f"s_bitcmp1_b32 s{sFT}, 0")
    e(f"s_cselect_b32 s3, 8, {3*2048}")
    e(f"s_add_u32 s{sOs}, s{sO}, s3")
    e(f"s_add_u32 s{sOs+1}, s{sOs}, {224*1024}")
    e(f"s_bitcmp1_b32 s{sFT}, 0")
    e(f"s_cselect_b32 s3, 2048, 0")
    e(f"s_add_u32 s{sO}, s{sO}, s3")
    e(f"s_add_u32 s{sO+1}, s{sO}, 4096")
    e(f"s_add_u32 s{sO+2}, s{sO}, {224*1024}")
    e(f"s_add_u32 s{sO+3}, s{sO}, {224*1024+4096}")
    e(f"v_lshlrev_b32 v1, 4, v{vL}")
    ST = P.get("st1", "sc0 sc1")
    k = 0
    for gi, g in enumerate([(6,), (0, 1), (2, 3), (4, 5)]):
        gi -= 1
        for mp in ([0, 1, 2, 3] if len(g) == 2 else [0, 2]):
            tl = [(g[0], mp), (g[1], mp)] if len(g) == 2 else [(g[0], mp), (g[0], mp + 1)]
            T = vT + 8 * (k & 1); k += 1
            G = [acc(ft, 0, mt) + 2 * j for ft, mt in tl for j in range(2)]
            U = [acc(ft, 1, mt) + 2 * j for ft, mt in tl for j in range(2)]
            for j in range(4): e(f"v_pk_mul_f32 v[{T+2*j}:{T+2*j+1}], v[{G[j]}:{G[j]+1}], s[{sC1}:{sC1+1}]")
            for j in range(8): e(f"v_exp_f32 v{T+j}, v{T+j}")
            for j in range(4): e(f"v_pk_add_f32 v[{T+2*j}:{T+2*j+1}], v[{T+2*j}:{T+2*j+1}], s[{sC2}:{sC2+1}]")
            for j in range(8): e(f"v_rcp_f32 v{T+j}, v{T+j}")
            for j in range(4): e(f"v_pk_mul_f32 v[{T+2*j}:{T+2*j+1}], v[{T+2*j}:{T+2*j+1}], v[{G[j]}:{G[j]+1}]")
            for j in range(4): e(f"v_pk_mul_f32 v[{T+2*j}:{T+2*j+1}], v[{T+2*j}:{T+2*j+1}], v[{U[j]}:{U[j]+1}]")
            A = G[0]
            for j in range(4): e(f"v_cvt_pk_bf16_f32 v{A+j}, v{T+2*j}, v{T+2*j+1}")
            if len(g) == 2:
                off = gi * 2048 + (mp & 1) * 1024
                e(f"buffer_store_dwordx4 v[{A}:{A+3}], v1, s[{SH}:{SH+3}], s{sO + 2*(mp>>1) + (off>>12)} offen offset:{off & 4095} {ST}")
            else:
                for z in range(2):
                    e(f"buffer_store_dwordx2 v[{A+2*z}:{A+2*z+1}], v1, s[{SH}:{SH+3}], s{sOs + (mp>>1)} offen offset:{z*1024} {ST}")
    stamp(e, P, 3, mode=3 if SM == 3 else 1) if False else None
    SO = 16
    vHo, vZ, vOne, vPl, vPa = 2, 3, 4, 5, 6
    vA = [[16 + 4 * r + tt for tt in range(4)] for r in range(3)]
    vT2 = 28
    ACC2 = 32; WF = 96; LAND = 160
    def acc2(hf, t_, mh): return ACC2 + hf * 32 + (t_ * 2 + mh) * 4
    def wf(st, sub, t_): return WF + st * 32 + (sub * 4 + t_) * 4
    def hr(s, sub, mh): return (s % NH) * 16 + (sub * 2 + mh) * 4
    srd(e, SO, 84, 2048 * 1024 * 2)
    e(f"s_lshl_b32 s{sT}, s{sMT2}, 2")
    e(f"s_add_u32 s{sT}, s{sT}, s{sWAVE}")
    e(f"s_mul_i32 s3, s{sT}, {224*1024}")
    e(f"s_mul_i32 s{sT}, s{sROLE}, {28*4096}")
    e(f"s_add_u32 s3, s3, s{sT}")
    e(f"v_add_u32 v{vHo}, s3, v1")
    e(f"v_mov_b32 v{vZ}, 0")
    e(f"v_mov_b32 v{vOne}, 1")
    e(f"v_and_b32 v{vPa}, 15, v{vL}")
    e(f"v_lshlrev_b32 v{vPa}, 2, v{vPa}")
    a, b, c = vT2, vT2 + 1, vT2 + 2
    e(f"v_lshrrev_b32 v{a}, 2, v{vL}")
    e(f"v_lshlrev_b32 v{vA[0][0]}, 7, v{a}")
    e(f"v_bfe_u32 v{c}, v{vL}, 3, 2")
    e(f"v_lshl_add_u32 v{vA[0][0]}, v{c}, 5, v{vA[0][0]}")
    e(f"v_and_b32 v{c}, 3, v{vL}")
    e(f"v_lshl_add_u32 v{vA[0][0]}, v{c}, 3, v{vA[0][0]}")
    for tt in range(1, 4): e(f"v_xor_b32 v{vA[0][tt]}, {32*tt}, v{vA[0][0]}")
    for r in range(1, 3):
        for tt in range(4): e(f"v_add_u32 v{vA[r][tt]}, {r*65536}, v{vA[0][tt]}")
    e("s_waitcnt vmcnt(0)")
    e("s_mov_b64 exec, 1")
    e(f"buffer_store_dword v{vOne}, v{vZ}, s[{SH}:{SH+3}], s{sFHo} offen sc1")
    e("s_mov_b64 exec, -1")
    e(f"buffer_load_dword v{vPl}, v{vPa}, s[{SH}:{SH+3}], s{sFHi} offen sc1")
    stamp(e, P, 3)
    for r in range(ACC2, ACC2 + 64): e(f"v_mov_b32 v{r}, 0")
    e("s_barrier")
    vq = VQ()
    def reads2(i):
        st = i % 2; sl = SLOT[i % NS]
        return [f"ds_read_b64_tr_b16 v[{wf(st,sub,tt)+2*z}:{wf(st,sub,tt)+2*z+1}], v{vA[sl//8][tt]} offset:{(sl%8)*8192+(32*sub+16*z)*128}"
                for sub in range(2) for tt in range(4) for z in range(2)]
    def mf2(i):
        st = i % 2; s, hf = seq[i]
        return [f"{MF} v[{acc2(hf,tt,mh)}:{acc2(hf,tt,mh)+3}], v[{wf(st,sub,tt)}:{wf(st,sub,tt)+3}], a[{hr(s,sub,mh)}:{hr(s,sub,mh)+3}], v[{acc2(hf,tt,mh)}:{acc2(hf,tt,mh)+3}]"
                for sub in range(2) for tt in range(4) for mh in range(2)]
    HL = P.get("hld", "sc1")
    def gH(s):
        return [(run(sKH, sClsH, s, 4096) if j == 0 else [],
                 (f"buffer_load_dwordx4 a[{hr(s,j//2,j%2)}:{hr(s,j//2,j%2)+3}], v{vHo}, s[{SH}:{SH+3}], s{sKH} offen offset:{1024*j} {HL}", f"H{s}"), []) for j in range(4)]
    for x in reads2(0): e(x)
    e("s_mov_b32 s3, 0x20000")
    e.label("k_hpoll")
    e("s_waitcnt vmcnt(0)")
    e(f"v_cmp_ne_u32 vcc, 1, v{vPl}")
    e("s_cbranch_vccz k_h_ok")
    e(f"buffer_load_dword v{vPl}, v{vPa}, s[{SH}:{SH+3}], s{sFHi} offen sc1")
    e("s_sub_u32 s3, s3, 1")
    e("s_cbranch_scc0 k_hpoll")
    e("s_waitcnt vmcnt(0)")
    e.label("k_h_ok")
    stamp(e, P, 4); stamp(e, P, 1, mode=2)
    first, lastuse = {}, {}
    for i, (s, hf) in enumerate(seq):
        lastuse[s] = i; first.setdefault(s, i)
    DL = P.get("dlead", 0)
    ent = [(first[s], 0, gH(s), lastuse[s - NH] + 1 if s >= NH else -9) for s in range(N)]
    BP = P.get("bar2", 1)
    ent += [(i - BP - DL, 1, gD(i), -((NS - i) // BP) * BP) for i in range(NPRE, NSEQ)]
    ent.sort(key=lambda x: (x[0], x[1]))
    G = [[it, el] for _, _, it, el in ent]
    def take(i, k):
        out = []
        while len(out) < k:
            for g_ in G:
                if g_[1] <= i: break
            else: break
            kind = g_[0][0][1][1][0]
            firstk = next(x for x in G if x[0][0][1][1][0] == kind)
            if firstk is not g_: break
            if len(out) + len(g_[0]) > k and out: break
            out += g_[0]; G.remove(g_)
        return out
    for pre, ld, post in take(-9, P.get("pro2a", 16)):
        for x in pre: e(x)
        if pre: e("s_nop 0")
        e(ld[0]); vq.issue(ld[1])
    quota2 = P.get("quota2", 6)
    FS = PUB + P.get("fs2", 5); PS = PUB + P.get("ps2", 7); CS = PUB + P.get("cs2", 9)
    e.raw(".p2align 3")
    for i in range(NSEQ):
        s, hf = seq[i]
        if i == PUB: stamp(e, P, 3, mode=2)
        tags = {f"H{s}"}
        if i % BP == 0: tags |= {f"D{i+1+z}" for z in range(BP)}
        if i == FS: tags.add("PST")
        if i == CS: tags.add("POLL")
        e(f"s_waitcnt vmcnt({vq.need(tags)}) lgkmcnt(0)")
        if i == 0: stamp(e, P, 2, mode=2)
        if i < NSEQ - 1 and i % BP == 0: e("s_barrier")
        for z in range(BP): assert i % BP or i + 1 + z < NPRE or i + 1 + z >= NSEQ or f"D{i+1+z}" in vq.tags, (i, z)
        assert f"H{s}" in vq.tags
        if i == FS:
            e("s_mov_b64 exec, 1")
            e(f"buffer_store_dword v{vOne}, v{vZ}, s[{SH}:{SH+3}], s{sFo} offen sc1"); vq.issue("FLAG")
            e("s_mov_b64 exec, -1")
        if i == CS:
            e(f"v_cmp_ne_u32 vcc, 1, v{vPl}")
            e("s_cbranch_vccz k_p_ok")
            e("s_mov_b32 s3, 0x20000")
            e.label("k_ppoll")
            e("s_sub_u32 s3, s3, 1")
            e("s_cbranch_scc1 k_p_ok")
            e(f"buffer_load_dword v{vPl}, v{vZ}, s[{SH}:{SH+3}], s{sFi} offen sc1")
            e("s_waitcnt vmcnt(0)")
            e(f"v_cmp_ne_u32 vcc, 1, v{vPl}")
            e("s_cbranch_vccnz k_ppoll")
            e.label("k_p_ok")
        fill = {}
        def add(k_, x): fill.setdefault(k_, []).append(x)
        R = reads2(i + 1) if i < NSEQ - 1 else []
        for pos, x in zip(spread(len(R), 0, P.get("r2hi", 11)), R): add(pos, x)
        lo = 0
        if i == PUB:
            items = []
            for j in range(8):
                pre = [f"s_add_u32 s{sPo}, s{sPo}, 4096"] if j == 4 else []
                items.append((pre, (f"buffer_store_dwordx4 v[{ACC2+32+4*j}:{ACC2+32+4*j+3}], v1, s[{SH}:{SH+3}], s{sPo} offen offset:{1024*(j%4)} sc1", "PST"), []))
            lo = 1
        elif i == CS:
            items = []
            for j in range(8):
                pre = [f"s_add_u32 s{sPi}, s{sPi}, 4096"] if j == 4 else []
                items.append((pre, (f"buffer_load_dwordx4 v[{LAND+4*j}:{LAND+4*j+3}], v1, s[{SH}:{SH+3}], s{sPi} offen offset:{1024*(j%4)} sc1", "PART"), []))
        else:
            items = take(i, quota2)
            if i == PS:
                items.append(([], (f"buffer_load_dword v{vPl}, v{vZ}, s[{SH}:{SH+3}], s{sFi} offen sc1", "POLL"), []))
        for pos, (pre, ld, post) in zip(spread(len(items), lo, 15), items):
            for x in pre: add(pos - 1, x)
            add(pos, ld)
        emit_stream(e, vq, mf2(i), fill)
    assert not G
    stamp(e, P, 4, mode=2)
    e(f"s_lshl_b32 s{sT}, s{sMT2}, 2")
    e(f"s_add_u32 s{sT}, s{sT}, s{sWAVE}")
    e(f"s_lshl_b32 s{sT}, s{sT}, 16")
    e(f"s_lshl_b32 s3, s{sNT2}, 8")
    e(f"s_add_u32 s{sT}, s{sT}, s3")
    e(f"s_lshl_b32 s3, s{sROLE}, 7")
    e(f"s_add_u32 s{sT}, s{sT}, s3")
    e(f"s_add_u32 s3, s{sT}, {16*2048}")
    e(f"v_and_b32 v{a}, 15, v{vL}")
    e(f"v_bfe_u32 v{b}, v{vL}, 4, 1")
    e(f"v_lshlrev_b32 v{b}, 5, v{b}")
    e(f"v_lshl_add_u32 v{a}, v{a}, 11, v{b}")
    e(f"v_lshrrev_b32 v{b}, 5, v{vL}")
    e(f"v_lshl_add_u32 v{a}, v{b}, 4, v{a}")
    e("s_waitcnt vmcnt(0)")
    for j in range(16):
        e(f"v_pk_add_f32 v[{ACC2+2*j}:{ACC2+2*j+1}], v[{ACC2+2*j}:{ACC2+2*j+1}], v[{LAND+2*j}:{LAND+2*j+1}]")
    for mh in range(2):
        for tt in range(4):
            A = acc2(0, tt, mh); D = WF + (mh * 4 + tt) * 2
            e(f"v_cvt_pk_bf16_f32 v{D}, v{A}, v{A+1}")
            e(f"v_cvt_pk_bf16_f32 v{D+1}, v{A+2}, v{A+3}")
    e("s_nop 1")
    for mh in range(2):
        for pr in range(2):
            D = WF + (mh * 4 + pr * 2) * 2
            e(f"v_permlane16_swap_b32 v{D}, v{D+2}")
            e(f"v_permlane16_swap_b32 v{D+1}, v{D+3}")
            e(f"buffer_store_dwordx4 v[{D}:{D+3}], v{a}, s[{SO}:{SO+3}], s{3 if mh else sT} offen offset:{64*pr}")
    if SM: e("s_waitcnt vmcnt(0)")
    if SM: e(f"s_memrealtime s[74:75]" if SM >= 3 else "s_memtime s[74:75]")
    stamp(e, P, 7, True)
    dump_stamps(e, P, 8, 0, sWAVE, 12)
    e.label("k_done")
    e("s_endpgm")
    return kd(n, 512, 102, 256)

def gen(P):
    e = E()
    e.raw('.amdgcn_target "amdgcn-amd-amdhsa--gfx950"\n.text')
    n = "standalone__glu_gated_swiglu__prompt_kernel"
    d = fused(e, P, n)
    hdr = HDR.rsplit("; kernel 1", 1)[0]
    return (hdr + "; one launch: phase 1 h = silu(x@w1)*(x@w3) -> d_ws (MFMA-fragment layout), flag hand-off, phase 2 out = h@w2 (split-K pairs)\n"
            "; @launch grid=(256,1,1) block=(256,1,1) lds=163840\n" + e.text() + d)

if __name__ == "__main__":
    out = sys.argv[1]
    P = json.loads(sys.argv[2]) if len(sys.argv) > 2 else {}
    open(out, "w").write(gen(P))
```
